```python
import torch

def _softmax(x, axis=-1):
    return torch.softmax(x, dim=axis)
def _gelu(x):
    return torch.nn.functional.gelu(x, approximate="tanh")
def _silu(x):
    return torch.nn.functional.silu(x)
def _sigmoid(x):
    return torch.sigmoid(x)
def _layernorm(x, axis=-1, eps=1e-5):
    m = x.mean(dim=axis, keepdim=True)
    v = x.var(dim=axis, keepdim=True, unbiased=False)
    return (x - m) / torch.sqrt(v + eps)
def _scatter_add(tgt, idx, src, axis=0):
    return tgt.clone().index_add_(axis, idx, src)
def _segment_sum(src, seg, n):
    out = torch.zeros((n,) + src.shape[1:], dtype=src.dtype)
    return out.index_add_(0, seg, src)
def _pad(x, pw):
    flat = tuple(v for pair in reversed(pw) for v in pair)
    return torch.nn.functional.pad(x, flat)

kernel_name = 'recurrent_scan__ssm_conv_s5__dense_activation_mish__prompt'

def setup_inputs():

    _w = (lambda a: (lambda t: t.to(torch.bfloat16) if t.is_floating_point() else t)(torch.as_tensor(a)))
    def _A_setup():
        B, S, D = 1, 2048, 576
        P = D
        Lambda_re = -0.5 * (lambda _x: torch.exp(torch.as_tensor(_x)))((lambda *s: torch.randn(*s, dtype=torch.bfloat16) * 0.4)(P))
        Lambda_im = (lambda *s: torch.randn(*s, dtype=torch.bfloat16) * 0.8)(P) * 1.0
        B_re = (lambda *s: torch.randn(*s, dtype=torch.bfloat16) * 0.4)(P, D) * (D ** -0.5)
        B_im = (lambda *s: torch.randn(*s, dtype=torch.bfloat16) * 0.8)(P, D) * (D ** -0.5)
        C_re = (lambda *s: torch.randn(*s, dtype=torch.bfloat16) * 0.8)(D, P) * (P ** -0.5)
        C_im = (lambda *s: torch.randn(*s, dtype=torch.bfloat16) * 0.8)(D, P) * (P ** -0.5)
        log_dt = (lambda *s: torch.randn(*s, dtype=torch.bfloat16) * 0.4)(P) * 0.3 - 2.0
        Dskip = (lambda *s: torch.randn(*s, dtype=torch.bfloat16) * 0.2)(D)
        return {
            "x": _w((lambda *s: torch.randn(*s, dtype=torch.bfloat16) * 0.05)(B, S, D)),
            "Lambda_re": _w(Lambda_re),
            "Lambda_im": _w(Lambda_im),
            "B_re": _w(B_re),
            "B_im": _w(B_im),
            "C_re": _w(C_re),
            "C_im": _w(C_im),
            "log_dt": _w(log_dt),
            "Dskip": _w(Dskip),
        }
    _A_in = _A_setup()

    def _B_setup():
        B, S, D, F = 1, 2048, 576, 4608
        return {
            "x": _w((lambda *s: torch.randn(*s, dtype=torch.bfloat16) * 0.05)(B, S, D)),
            "w1": _w((lambda *s: torch.randn(*s, dtype=torch.bfloat16) * 0.8)(D, F) * (D ** -0.5)),
            "b1": _w((lambda *s: torch.randn(*s, dtype=torch.bfloat16) * 0.4)(F)),
            "w2": _w((lambda *s: torch.randn(*s, dtype=torch.bfloat16) * 0.1)(F, D) * (F ** -0.5)),
        }
    _B_in = _B_setup()

    return {
        "A_x": _A_in["x"],
        "A_Lambda_re": _A_in["Lambda_re"],
        "A_Lambda_im": _A_in["Lambda_im"],
        "A_B_re": _A_in["B_re"],
        "A_B_im": _A_in["B_im"],
        "A_C_re": _A_in["C_re"],
        "A_C_im": _A_in["C_im"],
        "A_log_dt": _A_in["log_dt"],
        "A_Dskip": _A_in["Dskip"],
        "B_x": _B_in["x"],
        "B_w1": _B_in["w1"],
        "B_b1": _B_in["b1"],
        "B_w2": _B_in["w2"],
    }

def reference(A_x, A_Lambda_re, A_Lambda_im, A_B_re, A_B_im, A_C_re, A_C_im, A_log_dt, A_Dskip, B_x, B_w1, B_b1, B_w2):
    def _A_ref(x, Lambda_re, Lambda_im, B_re, B_im, C_re, C_im, log_dt, Dskip):
        Bsz, L, H = x.shape
        Lam = Lambda_re + 1j * Lambda_im
        Bmat = B_re + 1j * B_im
        Cmat = C_re + 1j * C_im
        dt = torch.exp(log_dt)
        Lam_bar = torch.exp(dt * Lam)
        B_bar = ((Lam_bar - 1.0) / Lam)[:, None] * Bmat
        Bu = torch.einsum("bld,pd->blp", x + 0j, B_bar)
        h = torch.zeros_like(Bu[:, 0, :])
        hs = []
        for t in range(L):
            h = Lam_bar[None, :] * h + Bu[:, t, :]
            hs.append(h)
        hseq = torch.stack(hs, 1)
        y = 2.0 * torch.einsum("blp,dp->bld", hseq, Cmat).real + x * Dskip[None, None, :]
        return y

    def _B_ref(x, w1, b1, w2):
        h = torch.einsum("bsd,df->bsf", x, w1) + b1
        sp = torch.log1p(torch.exp(-torch.abs(h))) + torch.where(h > 0, h, torch.zeros_like(h))
        act = h * torch.tanh(sp)
        return torch.einsum("bsf,fd->bsd", act, w2)

    x = A_x
    xn = _layernorm(x, axis=-1)
    s = _A_ref(xn, A_Lambda_re, A_Lambda_im, A_B_re, A_B_im, A_C_re, A_C_im, A_log_dt, A_Dskip)
    g = _silu(_B_ref(xn, B_w1, B_b1, B_w2))
    return x + s * g
```

```python
KNAME = "recurrent_scan__ssm_conv_s5__dense_activation_mish__prompt_kernel"

class Asm:
    def __init__(self):
        self.lines = []
        self.nlabel = 0
    def __call__(self, s):
        for l in s.strip("\n").split("\n"):
            self.lines.append("    " + l.strip())
    def label(self, name):
        self.lines.append(name + ":")
    def newlabel(self, base="L"):
        self.nlabel += 1
        return f".{base}_{self.nlabel}"
    def comment(self, s):
        self.lines.append("    ; " + s)
    def text(self):
        return "\n".join(self.lines) + "\n"

def vr(base, n=1):
    return f"v{base}" if n == 1 else f"v[{base}:{base+n-1}]"
def ar(base, n=1):
    return f"a{base}" if n == 1 else f"a[{base}:{base+n-1}]"
def sr(base, n=1):
    return f"s{base}" if n == 1 else f"s[{base}:{base+n-1}]"

def wrap(body, grid, block, lds, nvgpr, accum, nsgpr=102, kname=KNAME, header=""):
    return f"""{header}; @launch grid=({grid},1,1) block=({block},1,1) lds={lds}
.amdgcn_target "amdgcn-amd-amdhsa--gfx950"
.text
.globl {kname}
.p2align 8
.type {kname},@function
{kname}:
{body}
.section .rodata,"a"
.p2align 6
.amdhsa_kernel {kname}
  .amdhsa_next_free_vgpr {nvgpr}
  .amdhsa_next_free_sgpr {nsgpr}
  .amdhsa_accum_offset {accum}
  .amdhsa_group_segment_fixed_size 0
  .amdhsa_kernarg_size 128
  .amdhsa_user_sgpr_count 2
  .amdhsa_user_sgpr_kernarg_segment_ptr 1
  .amdhsa_system_sgpr_workgroup_id_x 1
.end_amdhsa_kernel
"""
```

```python
import sys
from asmlib import *

SLOT = 16384
NSLOT = 9
MISC = 9 * SLOT
LDS_TOTAL = 10 * SLOT
PART = 2359296
WS_STATS = 0x1400000
WS_E = 0x1500000
WS_TS = 64 << 20
XN = 4 * SLOT
XP = 1168

class Prog(Asm):
    def __init__(self):
        super().__init__()
        self.ds_n = 0; self.ds_done = 0
        self.vm_n = 0; self.vm_done = 0
    def ds(self, s):
        self(s); self.ds_n += 1; return self.ds_n
    def vm(self, s):
        self(s); self.vm_n += 1; return self.vm_n
    def wait(self, ds=None, vm=None):
        parts = []
        if vm is not None and vm > self.vm_done:
            n = min(self.vm_n - vm, 63); parts.append(f"vmcnt({n})"); self.vm_done = self.vm_n - n
        if ds is not None and ds > self.ds_done:
            n = min(self.ds_n - ds, 15); parts.append(f"lgkmcnt({n})"); self.ds_done = self.ds_n - n
        if parts: self("s_waitcnt " + " ".join(parts))
    def wait_all(self):
        self("s_waitcnt vmcnt(0) lgkmcnt(0)"); self.vm_done = self.vm_n; self.ds_done = self.ds_n
    def state(self): return (self.ds_n, self.ds_done, self.vm_n, self.vm_done)
    def set_state(self, s): self.ds_n, self.ds_done, self.vm_n, self.vm_done = s

S_X = 4; S_WA = 8; S_WB = 12; S_WS = 16; S_AUX = 20; S_AUX2 = 24; S_DBG = 28
S_P0 = 32; S_P1 = 36; S_P2 = 40
S_W = 44; S_TW = 45; S_FW = 46; S_M = 47; S_SL = 48
S_T = 49; S_T2 = 50; S_T3 = 51
S_LDSW = 52; S_LDSY = 53
S_A = 54; S_A2 = 55; S_ST = 56; S_RC = 57
S_C = 58
S_D = 64
S_DB = 70
S_EX = 80
S_CNT = 82
S_DB2 = 84
S_TS = 94
V_T = 0; V_DMA1 = 1; V_DMA2 = 2; V_RA = 3; V_RB = 6; V_B1 = 9; V_AW = 10; V_AR = 11; V_L16 = 12; V_T1 = 13; V_T2 = 14; V_T3 = 15
V_FR = 16; V_ACC0 = 32; V_ACC1 = 48; V_TMP = 64; V_H = 72

def srd(a, s, size):
    a(f"s_mov_b32 s{s+2}, {size}")
    a(f"s_mov_b32 s{s+3}, 0x00020000")

class TS:
    def __init__(self, a, on): self.a = a; self.on = on; self.n = 0
    def stamp(self):
        if not self.on: return
        a = self.a; i = self.n; self.n += 1
        a(f"s_memrealtime s[{S_TS}:{S_TS+1}]")
        a(f"s_memtime s[{S_TS+2}:{S_TS+3}]")
        a("s_waitcnt lgkmcnt(0)"); a.ds_done = a.ds_n
        a(f"""
        v_mov_b32 v{V_T2}, s{S_TS}
        v_mov_b32 v{V_T3}, s{S_TS+2}
        s_lshl_b32 s{S_TS}, s2, 10
        s_lshl_b32 s{S_TS+1}, s{S_W}, 7
        s_add_u32 s{S_TS}, s{S_TS}, s{S_TS+1}
        s_add_u32 s{S_TS}, s{S_TS}, {WS_TS + 8*i}
        s_mov_b64 exec, 1
        """)
        a.vm(f"buffer_store_dwordx2 v[{V_T2}:{V_T3}], off, s[{S_WS}:{S_WS+3}], s{S_TS}")
        a("s_mov_b64 exec, -1")
    def flush(self): pass

class SlotPlan:
    def __init__(self, nstage_periods, reserved, maxper=2, first_free=None):
        self.cons = nstage_periods
        self.res = reserved
        self.slot = {}
        self.issue = {}
        busy = {k: (-2 if first_free is None else first_free.get(k, -2)) for k in range(NSLOT)}
        t = 0; n = len(self.cons)
        p = -1
        last = max(self.cons)
        while t < n and p <= last:
            cnt = 0
            while t < n and (cnt < maxper or p == -1):
                c = self.cons[t]
                cand = [k for k in range(NSLOT) if busy[k] < p and
                        all(not (k == rs and rf <= c and rl >= p) for rs, rf, rl in self.res)]
                if not cand: break
                k = cand[0]
                self.slot[t] = k; busy[k] = c
                self.issue.setdefault(p, []).append(t)
                assert p <= c - 2 or p == -1, f"stage {t} issued too late: period {p} consumed {c}"
                t += 1; cnt += 1
            p += 1
        assert t == n, "not all stages issued"

def lds_ref(base_v, off):
    return f"v{base_v + (off >> 16)} offset:{off & 0xffff}"

def prologue_common(a, ts, ssm):
    a(f"""
    v_lshrrev_b32 v{V_T1}, 3, v0
    v_and_b32 v{V_T2}, 7, v0
    v_mul_u32_u24 v{V_T3}, 1152, v{V_T1}
    v_lshl_add_u32 v{V_T3}, v{V_T2}, 4, v{V_T3}
    s_mul_i32 s{S_T}, s{S_M}, 73728
    s_mul_i32 s{S_T2}, s{S_W}, 9216
    s_add_u32 s{S_T}, s{S_T}, s{S_T2}
    """)
    tok = None
    for i in range(9):
        tok = a.vm(f"buffer_load_dwordx4 v[{16+4*i}:{19+4*i}], v{V_T3}, s[{S_X}:{S_X+3}], s{S_T} offen offset:{128*i}")
    return tok

def layernorm(a, xtok, ssm):
    X = 16; S1 = 52; S2 = 53; T = 54
    a.wait(vm=xtok)
    a(f"v_mov_b32 v{T}, 0x3f803f80")
    a(f"v_mov_b32 v{S1}, 0\nv_mov_b32 v{S2}, 0\nv_mov_b32 v{T+1}, 0\nv_mov_b32 v{T+2}, 0")
    for i in range(36):
        s1 = S1 if i % 2 == 0 else T + 1
        s2 = S2 if i % 2 == 0 else T + 2
        a(f"v_dot2_f32_bf16 v{s1}, v{X+i}, v{T}, v{s1}")
        a(f"v_dot2_f32_bf16 v{s2}, v{X+i}, v{X+i}, v{s2}")
    a("s_nop 3")
    a(f"v_add_f32 v{S1}, v{S1}, v{T+1}\nv_add_f32 v{S2}, v{S2}, v{T+2}")
    for dpp in ("quad_perm:[1,0,3,2]", "quad_perm:[2,3,0,1]", "row_half_mirror"):
        a("s_nop 1")
        a(f"v_add_f32_dpp v{S1}, v{S1}, v{S1} {dpp} row_mask:0xf bank_mask:0xf")
        a(f"v_add_f32_dpp v{S2}, v{S2}, v{S2} {dpp} row_mask:0xf bank_mask:0xf")
    inv = "0x3ae38e39"
    a(f"""
    v_mul_f32 v{S1}, {inv}, v{S1}
    v_mul_f32 v{S2}, {inv}, v{S2}
    v_fma_f32 v{S2}, -v{S1}, v{S1}, v{S2}
    v_max_f32 v{S2}, 0, v{S2}
    v_cvt_pk_bf16_f32 v{T}, v{S1}, v{S2}
    v_lshlrev_b32 v{S1}, 16, v{T}
    v_and_b32 v{S2}, 0xffff0000, v{T}
    v_add_f32 v{S2}, 0x3727c5ac, v{S2}
    v_cvt_pk_bf16_f32 v{T}, v{S2}, v{S2}
    v_lshlrev_b32 v{S2}, 16, v{T}
    v_sqrt_f32 v{S2}, v{S2}
    s_nop 0
    v_cvt_pk_bf16_f32 v{T}, v{S2}, v{S2}
    v_lshlrev_b32 v{S2}, 16, v{T}
    v_rcp_f32 v{T+2}, v{S2}
    s_nop 0
    v_mov_b32 v{T+3}, v{T+2}
    v_mul_f32 v{T+4}, v{S1}, v{T+2}
    v_sub_f32 v{T+4}, 0, v{T+4}
    v_mov_b32 v{T+5}, v{T+4}
    """)
    RI = T + 2; NM = T + 4
    if ssm:
        L = a.newlabel("st")
        a(f"""
        s_cmp_lg_u32 s{S_SL}, 6
        s_cbranch_scc1 {L}
        v_mov_b32 v{T+6}, v{S1}
        v_mov_b32 v{T+7}, v{RI}
        v_lshlrev_b32 v{T+8}, 3, v{V_T1}
        v_cmp_eq_u32 vcc, 0, v{V_T2}
        s_lshl_b32 s{S_T}, s{S_M}, 9
        s_lshl_b32 s{S_T2}, s{S_W}, 6
        s_add_u32 s{S_T}, s{S_T}, s{S_T2}
        s_add_u32 s{S_T}, s{S_T}, {WS_STATS}
        s_and_saveexec_b64 s[{S_EX}:{S_EX+1}], vcc
        buffer_store_dwordx2 v[{T+6}:{T+7}], v{T+8}, s[{S_WS}:{S_WS+3}], s{S_T} offen
        s_mov_b64 exec, s[{S_EX}:{S_EX+1}]
        s_waitcnt vmcnt(0)
        """)
        a.label(L)
    a(f"""
    s_mul_i32 s{S_T}, s{S_W}, {8*XP}
    s_add_u32 s{S_T}, s{S_T}, {XN}
    v_mul_u32_u24 v{V_T3}, {XP}, v{V_T1}
    v_lshl_add_u32 v{V_T3}, v{V_T2}, 4, v{V_T3}
    v_add_u32 v{V_T3}, s{S_T}, v{V_T3}
    """)
    U = 64
    for i in range(9):
        for j in range(4):
            r = X + 4*i + j; u = U + 2*((4*i+j) % 4)
            a(f"v_lshlrev_b32 v{u}, 16, v{r}")
            a(f"v_and_b32 v{u+1}, 0xffff0000, v{r}")
            a(f"v_pk_fma_f32 v[{u}:{u+1}], v[{u}:{u+1}], v[{RI}:{RI+1}], v[{NM}:{NM+1}]")
            a(f"v_cvt_pk_bf16_f32 v{r}, v{u}, v{u+1}")
        a.ds(f"ds_write_b128 v{V_T3}, v[{X+4*i}:{X+4*i+3}] offset:{128*i}")
    a(f"v_and_b32 v{V_T1}, 31, v0")
    if ssm:
        a(f"""
        v_bfe_u32 v{V_T2}, v{V_T1}, 2, 1
        v_lshlrev_b32 v{V_T2}, 4, v{V_T2}
        v_lshrrev_b32 v{V_T3}, 3, v{V_T1}
        v_lshl_add_u32 v{V_T2}, v{V_T3}, 2, v{V_T2}
        v_and_b32 v{V_T1}, 3, v{V_T1}
        v_add_u32 v{V_T1}, v{V_T1}, v{V_T2}
        """)
    a(f"""
    v_mul_u32_u24 v{V_T1}, {XP}, v{V_T1}
    v_lshrrev_b32 v{V_T2}, 5, v0
    v_lshl_add_u32 v{V_T1}, v{V_T2}, 4, v{V_T1}
    s_mul_i32 s{S_T}, s{S_TW}, {32*XP}
    s_add_u32 s{S_T}, s{S_T}, {XN}
    v_add_u32 v{V_T1}, s{S_T}, v{V_T1}
    """)
    a.wait(ds=a.ds_n)
    a("s_barrier")
    for ks in range(36):
        a.ds(f"ds_read_b128 a[{4*ks}:{4*ks+3}], v{V_T1} offset:{32*ks}")
    a.wait(ds=a.ds_n)

def dma_emit(a, ldsreg, ldsoff, vreg, srdreg, sregs, const):
    a(f"s_add_u32 m0, s{ldsreg}, {ldsoff}")
    if len(sregs) == 1:
        a(f"s_add_u32 s{S_T}, s{sregs[0]}, {const}")
    else:
        a(f"s_add_u32 s{S_T}, s{sregs[0]}, s{sregs[1]}")
        if const: a(f"s_add_u32 s{S_T}, s{S_T}, {const}")
    return a.vm(f"buffer_load_dwordx4 v{vreg}, s[{srdreg}:{srdreg+3}], s{S_T} offen lds")

def mish_ops(acc, out):
    ops = []
    pos = [0, 2, 1, 3]
    for p in range(8):
        h0, h1 = acc + 2*p, acc + 2*p + 1
        t = V_TMP + 4 * (p & 1)
        o = out + 2 * pos[p >> 1] + (p & 1)
        ops += [f"v_mul_f32 v{t}, 0x3fb8aa3b, v{h0}", f"v_mul_f32 v{t+1}, 0x3fb8aa3b, v{h1}",
                f"v_exp_f32 v{t}, v{t}", f"v_exp_f32 v{t+1}, v{t+1}",
                f"v_fma_f32 v{t+2}, v{t}, 0.5, 1.0", f"v_fma_f32 v{t+3}, v{t+1}, 0.5, 1.0",
                f"v_fma_f32 v{t+2}, v{t}, v{t+2}, 1.0", f"v_fma_f32 v{t+3}, v{t+1}, v{t+3}, 1.0",
                f"v_rcp_f32 v{t+2}, v{t+2}", f"v_rcp_f32 v{t+3}, v{t+3}",
                f"v_fma_f32 v{t}, -v{h0}, v{t+2}, v{h0}", f"v_fma_f32 v{t+1}, -v{h1}, v{t+3}, v{h1}",
                f"v_cvt_pk_bf16_f32 v{o}, v{t}, v{t+1}"]
    return ops

class Step:
    def __init__(self, period, reads, mfmas, pre=None):
        self.period = period
        self.reads = reads
        self.mfmas = mfmas
        self.pre = pre or []
        self.tok = None
        self.fill = []

def run_steps(a, steps, p_first, p_last, plan, dmas, dma_tok, dist, nbuf, primed=0, end_ds=None, skip_mfma=False, start_idx=0):
    idx = start_idx
    n = len(steps)
    def issue(i):
        if i < n and steps[i].tok is None and not skip_mfma:
            t = None
            for r in steps[i].reads(V_FR + 4 * (i % nbuf)): t = a.ds(r)
            steps[i].tok = t
    for p in range(p_first, p_last + 1):
        mine = []
        while idx < n and steps[idx].period == p:
            mine.append(idx); idx += 1
        dq = []
        for t in plan.issue.get(p, []):
            dq += [(t, f) for f in dmas[t](plan.slot[t])]
        for j, i in enumerate(mine):
            st = steps[i]
            for k in range(dist): issue(i + k)
            if not skip_mfma:
                w = st.tok
                for f in st.pre: w = max(w, f())
                a.wait(ds=w)
                ms = st.mfmas(V_FR + 4 * (i % nbuf))
                a(ms[0])
                issue(i + dist)
                for m_ in ms[1:]: a(m_)
            for f in st.fill:
                if callable(f): f()
                else: a(f)
            per = -(-len(dq) // max(1, len(mine) - j)) if dq else 0
            for _ in range(per):
                t, f = dq.pop(0); dma_tok[t] = f()
        for t, f in dq: dma_tok[t] = f()
        need = [dma_tok[t] for t in range(len(plan.cons)) if plan.cons[t] <= p + 2 and t in dma_tok]
        a.wait(vm=max(need) if need else None, ds=(end_ds(p) if end_ds else None))
        a("s_barrier")
    return idx

def phase2_steps(a, period0, nk, aread, breg, stage_of, st_sc, pre_of=None):
    steps = []
    for db in range(9):
        acc = V_ACC0 + 8 * (db & 1)
        for k in range(nk):
            n = db * nk + k
            def mf(buf, db=db, k=k, acc=acc, n=n):
                r = []
                for T in range(2):
                    c = "0" if k == 0 else f"v[{acc+4*T}:{acc+4*T+3}]"
                    r.append(f"v_mfma_f32_16x16x32_bf16 v[{acc+4*T}:{acc+4*T+3}], v[{buf}:{buf+3}], {breg(n, T)}, {c}")
                return r
            st = Step(period0 + stage_of(n), (lambda buf, n=n: aread(n, buf)), mf, pre_of(n) if pre_of else None)
            steps.append(st)
    def store(db):
        acc = V_ACC0 + 8 * (db & 1); sg = V_TMP + 4 * (db & 1)
        def f():
            for j in range(4):
                a(f"v_cvt_pk_bf16_f32 v{sg+j}, v{acc+2*j}, v{acc+2*j+1}")
            a(f"s_lshl_b32 s{S_T2}, s{S_DB+db}, {st_sc}")
            a(f"s_add_u32 s{S_T2}, s{S_T2}, s{S_ST}")
            a.vm(f"buffer_store_dwordx4 v[{sg}:{sg+3}], v{V_L16}, s[{S_WS}:{S_WS+3}], s{S_T2} offen {OPT['stpol']}")
        return f
    for db in range(8):
        steps[(db + 1) * nk + 2].fill.append(store(db))
    return steps, store(8)

def rot_setup(a, scale_db, scale2=None):
    a(f"""
    s_mul_i32 s{S_T}, s{S_M}, 57
    s_lshr_b32 s{S_T}, s{S_T}, 9
    s_mul_i32 s{S_T}, s{S_T}, 9
    s_sub_u32 s{S_T}, s{S_M}, s{S_T}
    """)
    if not OPT['rot']: a(f"s_mov_b32 s{S_T}, 0")
    for j in range(9):
        a(f"s_mul_i32 s{S_DB+j}, s{S_T}, {scale_db}")
        if scale2: a(f"s_mul_i32 s{S_DB2+j}, s{S_T}, {scale2}")
        a(f"s_add_u32 s{S_T}, s{S_T}, 1")
        a(f"s_cmp_ge_u32 s{S_T}, 9")
        a(f"s_cselect_b32 s{S_T}, 0, s{S_T}")

def gen_ffn(a, ts):
    a(f"""
    s_load_dwordx2 s[{S_WA}:{S_WA+1}], s[0:1], 80
    s_load_dwordx2 s[{S_WB}:{S_WB+1}], s[0:1], 96
    s_load_dwordx2 s[{S_AUX}:{S_AUX+1}], s[0:1], 88
    s_and_b32 s{S_FW}, s{S_W}, 3
    s_waitcnt lgkmcnt(0)
    """)
    srd(a, S_WA, 5308416); srd(a, S_WB, 5308416); srd(a, S_AUX, 9216)
    xtok = prologue_common(a, ts, False)
    a(f"""
    v_lshrrev_b32 v60, 4, v0
    v_lshlrev_b32 v60, 6, v60
    v_bfe_u32 v{V_DMA1}, v0, 2, 2
    v_mul_u32_u24 v{V_DMA1}, 9216, v{V_DMA1}
    v_add_u32 v{V_DMA1}, v{V_DMA1}, v60
    v_and_b32 v60, 3, v0
    v_lshl_add_u32 v{V_DMA1}, v60, 4, v{V_DMA1}
    """)
    a(f"""
    s_mul_i32 s{S_T}, s{S_M}, 43
    s_lshr_b32 s{S_T}, s{S_T}, 8
    s_mul_i32 s{S_T}, s{S_T}, 6
    s_sub_u32 s{S_T}, s{S_M}, s{S_T}
    s_mul_i32 s{S_A}, s{S_SL}, 1536
    s_mul_i32 s{S_T2}, s{S_W}, {8*9216}
    s_add_u32 s{S_A}, s{S_A}, s{S_T2}
    s_mul_i32 s{S_A2}, s{S_SL}, {768*1152}
    s_mul_i32 s{S_T2}, s{S_W}, {16*1152}
    s_add_u32 s{S_A2}, s{S_A2}, s{S_T2}
    s_lshl_b32 s{S_LDSW}, s{S_W}, 11
    """)
    if not OPT['rot']: a(f"s_mov_b32 s{S_T}, 0")
    for c in range(6):
        a(f"s_lshl_b32 s{S_T2}, s{S_T}, 8")
        a(f"s_add_u32 s{S_C+c}, s{S_A}, s{S_T2}")
        a(f"s_mul_i32 s{S_T2}, s{S_T}, {128*1152}")
        a(f"s_add_u32 s{S_D+c}, s{S_A2}, s{S_T2}")
        a(f"s_add_u32 s{S_T}, s{S_T}, 1")
        a(f"s_cmp_ge_u32 s{S_T}, 6")
        a(f"s_cselect_b32 s{S_T}, 0, s{S_T}")
    cons = list(range(108))
    aslot = [0, 1, 2, 0, 1, 2]
    awp = [45, 47, 49, 51, 53, 56]
    arp = [(47, 48), (49, 50), (51, 52), (53, 54), (55, 56), (57, 58)]
    reserved = [(aslot[c], awp[c], arp[c][1]) for c in range(6)] + [(k, -1, -1) for k in range(4, 9)]
    plan = SlotPlan(cons, reserved, maxper=OPT['maxper'])
    dmas = {}
    for t in range(54):
        c, st = t // 9, t % 9
        dmas[t] = (lambda slot, c=c, st=st: [(lambda i=i: dma_emit(a, S_LDSW, slot*SLOT + i*1024, V_DMA1, S_WA, [S_C+c], (64*st + 4*i)*9216)) for i in range(2)])
    for t in range(54, 108):
        db, c = (t - 54) // 6, (t - 54) % 6
        dmas[t] = (lambda slot, db=db, c=c: [(lambda i=i: dma_emit(a, S_LDSW, slot*SLOT + i*1024, V_DMA2, S_WB, [S_D+c, S_DB+db], i*9216)) for i in range(2)])
    dma_tok = {}
    for t in plan.issue[-1]:
        for f in dmas[t](plan.slot[t]): dma_tok[t] = f()
    a(f"""
    s_lshl_b32 s{S_T}, s{S_W}, 6
    v_add_u32 v60, s{S_T}, v0
    v_lshlrev_b32 v61, 2, v60
    v_lshlrev_b32 v62, 3, v60
    v_add_u32 v62, {MISC}, v62
    v_cmp_gt_u32 vcc, 384, v60
    s_mul_i32 s{S_T}, s{S_SL}, 1536
    s_and_saveexec_b64 s[{S_EX}:{S_EX+1}], vcc
    """)
    btok = a.vm(f"buffer_load_dword v63, v61, s[{S_AUX}:{S_AUX+3}], s{S_T} offen")
    a(f"s_mov_b64 exec, s[{S_EX}:{S_EX+1}]")
    rot_setup(a, 128)
    a(f"""
    s_mul_i32 s{S_ST}, s{S_SL}, {PART}
    s_mul_i32 s{S_T}, s{S_M}, 73728
    s_add_u32 s{S_ST}, s{S_ST}, s{S_T}
    s_lshl_b32 s{S_T}, s{S_W}, 10
    s_add_u32 s{S_ST}, s{S_ST}, s{S_T}
    """)
    a(f"""
    v_lshrrev_b32 v68, 5, v0
    v_bfe_u32 v69, v0, 2, 2
    v_lshl_add_u32 v69, v68, 2, v69
    v_mul_u32_u24 v69, 1152, v69
    v_bfe_u32 v70, v0, 4, 1
    v_lshl_add_u32 v69, v70, 6, v69
    v_and_b32 v70, 3, v0
    v_lshlrev_b32 v68, 1, v68
    v_xor_b32 v70, v70, v68
    v_lshl_add_u32 v{V_DMA2}, v70, 4, v69
    """)
    a(f"""
    v_lshrrev_b32 v68, 5, v0
    v_lshlrev_b32 v68, 11, v68
    v_bfe_u32 v69, v0, 2, 2
    v_lshl_add_u32 v68, v69, 6, v68
    v_bfe_u32 v69, v0, 4, 1
    v_lshl_add_u32 v68, v69, 5, v68
    v_and_b32 v69, 3, v0
    v_lshl_add_u32 v68, v69, 3, v68
    s_lshl_b32 s{S_T}, s{S_FW}, 8
    v_add_u32 v{V_RA}, s{S_T}, v68
    v_add_u32 v{V_RA+1}, 0x10000, v{V_RA}
    v_add_u32 v{V_RA+2}, 0x20000, v{V_RA}
    """)
    a(f"""
    v_lshrrev_b32 v68, 5, v0
    v_lshlrev_b32 v68, 10, v68
    v_bfe_u32 v70, v0, 4, 1
    v_lshl_add_u32 v68, v70, 9, v68
    v_bfe_u32 v69, v0, 2, 2
    v_lshl_add_u32 v68, v69, 6, v68
    v_and_b32 v69, 3, v0
    v_lshl_add_u32 v68, v69, 3, v68
    s_and_b32 s{S_T}, s{S_FW}, 1
    v_xor_b32 v70, s{S_T}, v70
    v_lshl_add_u32 v68, v70, 5, v68
    s_lshr_b32 s{S_T}, s{S_FW}, 1
    s_lshl_b32 s{S_T}, s{S_T}, 8
    v_add_u32 v{V_RB}, s{S_T}, v68
    v_add_u32 v{V_RB+1}, 0x10000, v{V_RB}
    v_add_u32 v{V_RB+2}, 0x20000, v{V_RB}
    """)
    a(f"""
    v_lshrrev_b32 v68, 5, v0
    v_lshlrev_b32 v69, 4, v68
    s_lshl_b32 s{S_T}, s{S_FW}, 7
    s_add_u32 s{S_T}, s{S_T}, {MISC}
    v_add_u32 v{V_B1}, s{S_T}, v69
    v_lshlrev_b32 v69, 8, v68
    v_bfe_u32 v70, v0, 4, 1
    v_lshl_add_u32 v69, v70, 10, v69
    v_and_b32 v70, 15, v0
    v_lshl_add_u32 v69, v70, 4, v69
    s_lshl_b32 s{S_T}, s{S_FW}, 1
    s_add_u32 s{S_T}, s{S_T}, s{S_TW}
    s_lshl_b32 s{S_T}, s{S_T}, 11
    v_add_u32 v{V_AW}, s{S_T}, v69
    v_lshlrev_b32 v{V_L16}, 4, v0
    s_lshl_b32 s{S_T}, s{S_TW}, 11
    v_add_u32 v{V_AR}, s{S_T}, v{V_L16}
    """)
    a.wait(vm=btok)
    a(f"""
    v_lshlrev_b32 v68, 16, v63
    v_and_b32 v69, 0xffff0000, v63
    s_and_saveexec_b64 s[{S_EX}:{S_EX+1}], vcc
    """)
    a.ds("ds_write_b64 v62, v[68:69]")
    a(f"s_mov_b64 exec, s[{S_EX}:{S_EX+1}]")
    layernorm(a, xtok, False)
    need = [dma_tok[t] for t in dma_tok if t <= 1]
    a.wait(vm=max(need))
    a("s_barrier")
    ts.stamp()
    steps = []
    b1tok = {}
    def b1rd(c):
        acc = V_ACC0 + 16 * (c & 1)
        def f():
            a(f"s_sub_u32 s{S_T2}, s{S_C+c}, s{S_A}")
            a(f"s_lshl_b32 s{S_T2}, s{S_T2}, 1")
            a(f"v_add_u32 v{V_T}, s{S_T2}, v{V_B1}")
            for q in range(4):
                b1tok[c] = a.ds(f"ds_read_b128 v[{acc+4*q}:{acc+4*q+3}], v{V_T} offset:{32*q}")
        return f
    for c in range(6):
        acc = V_ACC0 + 16 * (c & 1)
        for kk in range(36):
            t = c * 9 + kk // 4
            def rd(buf, t=t, kk=kk):
                off = plan.slot[t] * SLOT + (kk % 4) * 4096
                return [f"ds_read_b64_tr_b16 v[{buf+2*h}:{buf+2*h+1}], {lds_ref(V_RA, off + h*1024)}" for h in range(2)]
            def mf(buf, acc=acc, kk=kk):
                return [f"v_mfma_f32_32x32x16_bf16 v[{acc}:{acc+15}], v[{buf}:{buf+3}], a[{4*kk}:{4*kk+3}], v[{acc}:{acc+15}]"]
            steps.append(Step(t, rd, mf, [(lambda c=c: b1tok[c])] if kk == 0 else None))
    def breg_idx(c, fw, T):
        i = (c * 8 + fw * 2 + T) * 4
        if i < 144: return f"a[{i}:{i+3}]"
        i -= 144
        v = (80 + i) if i < 32 else (V_ACC1 + i - 32)
        return f"v[{v}:{v+3}]"
    def aread(n, buf):
        db, k = n // 24, n % 24
        t = 54 + db * 6 + k // 4
        off = plan.slot[t] * SLOT + (k % 4) * 4096
        return [f"ds_read_b64_tr_b16 v[{buf+2*h}:{buf+2*h+1}], {lds_ref(V_RB, off + h*2048)}" for h in range(2)]
    brd = {}
    def pre_of(n):
        if n < 24: return [(lambda n=n: brd[(n // 4, n % 4)])]
        return None
    st2, last_store = phase2_steps(a, 54, 24, aread, lambda n, T: breg_idx((n % 24) // 4, n % 4, T), lambda n: n // 4, 6, pre_of)
    steps += st2
    wtok = {}
    def actw(c):
        hreg = V_H + 8 * (c % 5)
        def f():
            a.ds(f"ds_write_b128 v{V_AW}, v[{hreg}:{hreg+3}] offset:{aslot[c]*SLOT}")
            wtok[c] = a.ds(f"ds_write_b128 v{V_AW}, v[{hreg+4}:{hreg+7}] offset:{aslot[c]*SLOT + 512}")
        return f
    for c in range(6):
        ops = mish_ops(V_ACC0 + 16 * (c & 1), V_H + 8 * (c % 5))
        if c < 5:
            idxs = [(c + 1) * 36 + k for k in range(2, 34)]
        else:
            idxs = [216 + k for k in range(2, 11)]
        per = len(ops) / len(idxs)
        for j, i in enumerate(idxs):
            steps[i].fill += ops[int(round(j * per)):int(round((j + 1) * per))]
        if c < 5: steps[(c + 1) * 36 + 34 - 36].fill.append(b1rd(c + 1)) if False else None
    for c in range(1, 6):
        steps[c * 36 - 2].fill.append(b1rd(c))
    for c in range(6):
        steps[awp[c] * 4 + 3].fill.append(actw(c))
        for j in range(8):
            fw, T = j // 2, j % 2
            p = arp[c][j // 4]
            def f(c=c, fw=fw, T=T):
                brd[(c, fw)] = a.ds(f"ds_read_b128 {breg_idx(c, fw, T)}, v{V_AR} offset:{aslot[c]*SLOT + fw*4096 + T*1024}")
            steps[p * 4 + (j % 4)].fill.append(f)
    def end_ds(p):
        w = [wtok[c] for c in range(6) if awp[c] == p]
        return max(w) if w else None
    b1rd(0)()
    idx = run_steps(a, steps, 0, 53, plan, dmas, dma_tok, OPT['dist'], 4, end_ds=end_ds)
    ts.stamp()
    run_steps(a, steps, 54, 107, plan, dmas, dma_tok, OPT['dist'], 4, end_ds=end_ds, start_idx=idx)
    a("s_nop 7")
    last_store()
    ts.stamp()
    ts.flush()
    a("s_endpgm")

def consts(a, raw, out_l, out_c, scale, t):
    lre, lim, ldt = raw, raw + 1, raw + 2
    a(f"""
    v_lshlrev_b32 v{lre}, 16, v{lre}
    v_lshlrev_b32 v{lim}, 16, v{lim}
    v_lshlrev_b32 v{ldt}, 16, v{ldt}
    v_mul_f32 v{ldt}, 0x3fb8aa3b, v{ldt}
    v_exp_f32 v{ldt}, v{ldt}
    s_nop 0
    v_cvt_pk_bf16_f32 v{ldt}, v{ldt}, v{ldt}
    v_lshlrev_b32 v{ldt}, 16, v{ldt}
    v_mul_f32 v{t}, v{ldt}, v{lre}
    v_mul_f32 v{t+1}, v{ldt}, v{lim}
    v_mul_f32 v{t}, {fhex(1.4426950408889634*scale)}, v{t}
    v_mul_f32 v{t+1}, {fhex(0.15915494309189535*scale)}, v{t+1}
    v_exp_f32 v{t}, v{t}
    v_cos_f32 v{t+2}, v{t+1}
    v_sin_f32 v{t+3}, v{t+1}
    s_nop 0
    v_mul_f32 v{out_l}, v{t}, v{t+2}
    v_mul_f32 v{out_l+1}, v{t}, v{t+3}
    """)
    if out_c is not None:
        a(f"""
        v_add_f32 v{t}, -1.0, v{out_l}
        v_mul_f32 v{t+1}, v{lre}, v{lre}
        v_fma_f32 v{t+1}, v{lim}, v{lim}, v{t+1}
        v_rcp_f32 v{t+1}, v{t+1}
        v_mul_f32 v{t+2}, v{t}, v{lre}
        v_fma_f32 v{t+2}, v{out_l+1}, v{lim}, v{t+2}
        v_mul_f32 v{t+3}, v{out_l+1}, v{lre}
        v_fma_f32 v{t+3}, -v{t}, v{lim}, v{t+3}
        v_add_f32 v{t+1}, v{t+1}, v{t+1}
        v_mul_f32 v{out_c}, v{t+2}, v{t+1}
        v_mul_f32 v{out_c+1}, v{t+3}, v{t+1}
        """)

import struct
def fhex(x): return "0x%08x" % struct.unpack("<I", struct.pack("<f", x))[0]

V_G = [32, 64, 32]
V_LAM = 96
V_COEF = 102
V_L16C = 108
E_OFF = MISC

def cmul_add(a, dr, di, lr, li, xr, xi, ar_, ai_):
    a(f"v_fma_f32 v{dr}, v{lr}, v{xr}, v{ar_}")
    a(f"v_fma_f32 v{di}, v{lr}, v{xi}, v{ai_}")
    a(f"v_fma_f32 v{dr}, -v{li}, v{xi}, v{dr}")
    a(f"v_fma_f32 v{di}, v{li}, v{xr}, v{di}")

def horner(a, tiles, tmp):
    cur = {t: (V_G[t], V_G[t] + 16) for t in tiles}
    for k in range(1, 16):
        for j, t in enumerate(tiles):
            d = tmp + 4 * j + 2 * (k & 1)
            cmul_add(a, d, d + 1, V_LAM + 2*t, V_LAM + 2*t + 1, cur[t][0], cur[t][1], V_G[t] + k, V_G[t] + 16 + k)
            cur[t] = (d, d + 1)
    for j, t in enumerate(tiles):
        a.ds(f"ds_write_b64 v{V_B1}, v[{cur[t][0]}:{cur[t][1]}] offset:{t*4*32*8}")

def gen_ssm(a, ts):
    a(f"""
    s_load_dwordx2 s[{S_WA}:{S_WA+1}], s[0:1], 24
    s_load_dwordx2 s[{S_WB}:{S_WB+1}], s[0:1], 32
    s_load_dwordx2 s[{S_AUX}:{S_AUX+1}], s[0:1], 40
    s_load_dwordx2 s[{S_AUX2}:{S_AUX2+1}], s[0:1], 48
    s_load_dwordx2 s[{S_P0}:{S_P0+1}], s[0:1], 8
    s_load_dwordx2 s[{S_P1}:{S_P1+1}], s[0:1], 16
    s_load_dwordx2 s[{S_P2}:{S_P2+1}], s[0:1], 56
    s_load_dwordx2 s[{S_DBG}:{S_DBG+1}], s[0:1], 112
    s_add_u32 s{S_FW}, s{S_W}, s{S_TW}
    s_and_b32 s{S_FW}, s{S_FW}, 3
    s_sub_u32 s{S_RC}, s{S_SL}, 6
    s_waitcnt lgkmcnt(0)
    s_bitcmp1_b32 s{S_W}, 0
    s_cselect_b32 s{S_WA}, s{S_WB}, s{S_WA}
    s_cselect_b32 s{S_WA+1}, s{S_WB+1}, s{S_WA+1}
    s_bitcmp1_b32 s{S_W}, 2
    s_cselect_b32 s{S_AUX}, s{S_AUX2}, s{S_AUX}
    s_cselect_b32 s{S_AUX+1}, s{S_AUX2+1}, s{S_AUX+1}
    """)
    HALF = S_RC
    srd(a, S_WA, 663552); srd(a, S_AUX, 663552); srd(a, S_P0, 1152); srd(a, S_P1, 1152); srd(a, S_P2, 1152); srd(a, S_DBG, 256)
    xtok = prologue_common(a, ts, True)
    a(f"""
    v_lshrrev_b32 v60, 2, v0
    v_mul_u32_u24 v61, 1152, v60
    v_lshrrev_b32 v60, 4, v0
    v_sub_u32 v60, 0, v60
    v_xor_b32 v60, v60, v0
    v_and_b32 v60, 3, v60
    v_lshl_add_u32 v{V_DMA1}, v60, 4, v61
    s_mul_i32 s{S_A}, s{HALF}, {288*1152}
    s_lshr_b32 s{S_T}, s{S_W}, 1
    s_mul_i32 s{S_T2}, s{S_T}, {32*1152}
    s_lshl_b32 s{S_T}, s{S_T}, 6
    s_add_u32 s{S_A2}, s{S_A}, s{S_T}
    s_add_u32 s{S_A2}, s{S_A2}, {256*1152}
    s_add_u32 s{S_A}, s{S_A}, s{S_T2}
    s_lshl_b32 s{S_LDSW}, s{S_W}, 11
    s_and_b32 s{S_T}, s{S_W}, 3
    s_lshl_b32 s{S_LDSY}, s{S_T}, 10
    s_lshl_b32 s{S_T2}, s{S_TW}, 13
    s_add_u32 s{S_LDSY}, s{S_LDSY}, s{S_T2}
    s_mul_i32 s{S_C}, s{S_T}, {16*1152}
    s_mul_i32 s{S_T}, s{HALF}, 576
    s_add_u32 s{S_C}, s{S_C}, s{S_T}
    """)
    rot_setup(a, 128, 73728)
    PY = 45
    cons = list(range(41)) + [PY + i for i in range(41)]
    SPILL = 3
    HB = 4 * SLOT
    reserved = [(k, -1, -1) for k in range(4, 9)] + [(SPILL, 36, 44)] + [(k, 44, PY + 4) for k in range(4, 9)]
    plan = SlotPlan(cons, reserved, maxper=OPT['maxper'])
    dmas = {}
    for t in range(36):
        p, kk = t // 18, t % 18
        dmas[t] = (lambda slot, p=p, kk=kk: [(lambda i=i: dma_emit(a, S_LDSW, slot*SLOT + i*1024, V_DMA1, S_WA, [S_A], (128*p + 16*i)*1152 + kk*64)) for i in range(2)])
    for t in range(36, 41):
        st = t - 36
        dmas[t] = (lambda slot, st=st: [(lambda i=i: dma_emit(a, S_LDSW, slot*SLOT + i*1024, V_DMA1, S_WA, [S_A2], 16*i*1152 + st*256)) for i in range(2)])
    for t in range(41, 82):
        s_ = t - 41
        dmas[t] = (lambda slot, s_=s_: [(lambda i=i: dma_emit(a, S_LDSY, slot*SLOT + i*4096, V_DMA1, S_AUX, [S_C, S_DB2 + (2*s_+i)//9], ((2*s_+i) % 9)*64))
                                       for i in range(2) if 2*s_+i < 81])
    dma_tok = {}
    for t in plan.issue[-1]:
        for f in dmas[t](plan.slot[t]): dma_tok[t] = f()
    RAW = 72
    a(f"""
    v_and_b32 v60, 31, v0
    v_lshlrev_b32 v60, 1, v60
    s_mul_i32 s{S_T3}, s{HALF}, 576
    """)
    for t in range(3):
        a(f"s_add_u32 s{S_T}, s{S_FW}, {4*t}")
        a(f"s_min_u32 s{S_T}, s{S_T}, 8")
        a(f"s_lshl_b32 s{S_T}, s{S_T}, 6")
        a(f"s_add_u32 s{S_T}, s{S_T}, s{S_T3}")
        for j, sp in enumerate((S_P0, S_P1, S_P2)):
            a.vm(f"buffer_load_ushort v{RAW+3*t+j}, v60, s[{sp}:{sp+3}], s{S_T} offen")
    a(f"""
    s_lshl_b32 s{S_T}, s{S_W}, 6
    v_add_u32 v61, s{S_T}, v0
    v_min_u32 v61, 287, v61
    v_lshlrev_b32 v{V_AR}, 3, v61
    v_lshlrev_b32 v61, 1, v61
    """)
    for j, sp in enumerate((S_P0, S_P1, S_P2)):
        ptok = a.vm(f"buffer_load_ushort v{RAW+9+j}, v61, s[{sp}:{sp+3}], s{S_T3} offen")
    a(f"""
    s_mul_i32 s{S_ST}, s{S_SL}, {PART}
    s_mul_i32 s{S_T}, s{S_M}, 73728
    s_add_u32 s{S_ST}, s{S_ST}, s{S_T}
    s_lshl_b32 s{S_T}, s{S_W}, 10
    s_add_u32 s{S_ST}, s{S_ST}, s{S_T}
    v_lshlrev_b32 v{V_L16}, 4, v0
    """)
    a(f"""
    v_bfe_u32 v60, v0, 4, 1
    v_lshlrev_b32 v60, 10, v60
    v_and_b32 v61, 15, v0
    v_lshl_add_u32 v60, v61, 6, v60
    v_lshrrev_b32 v61, 2, v0
    v_sub_u32 v61, 0, v61
    v_lshrrev_b32 v62, 5, v0
    v_xor_b32 v61, v61, v62
    v_and_b32 v61, 3, v61
    v_lshl_add_u32 v60, v61, 4, v60
    s_lshl_b32 s{S_T}, s{S_FW}, 12
    v_add_u32 v{V_RA}, s{S_T}, v60
    v_add_u32 v{V_RA+1}, 0x10000, v{V_RA}
    v_add_u32 v{V_RA+2}, 0x20000, v{V_RA}
    v_xor_b32 v{V_RB}, 32, v{V_RA}
    v_xor_b32 v{V_RB+1}, 32, v{V_RA+1}
    v_xor_b32 v{V_RB+2}, 32, v{V_RA+2}
    """)
    a(f"""
    v_lshrrev_b32 v60, 5, v0
    v_mul_u32_u24 v60, {288*8}, v60
    v_and_b32 v61, 31, v0
    v_lshl_add_u32 v60, v61, 3, v60
    s_mul_i32 s{S_T}, s{S_TW}, {2*288*8}
    s_lshl_b32 s{S_T2}, s{S_FW}, 8
    s_add_u32 s{S_T}, s{S_T}, s{S_T2}
    s_add_u32 s{S_T}, s{S_T}, {E_OFF}
    v_add_u32 v{V_B1}, s{S_T}, v60
    """)
    a.wait(vm=ptok)
    for t in range(3): consts(a, RAW + 3*t, V_LAM + 2*t, V_COEF + 2*t, 1.0, 60)
    consts(a, RAW + 9, V_L16C, None, 16.0, 60)
    layernorm(a, xtok, True)
    need = [dma_tok[t] for t in dma_tok if t <= 1]
    a.wait(vm=max(need))
    a("s_barrier")
    ts.stamp()
    def s1_steps(t_tile, stages):
        steps = []
        G = V_G[t_tile]
        for (t, kk, boff) in stages:
            for ks in range(2):
                for mat in range(2):
                    k16 = 2 * kk + ks
                    def rd(buf, t=t, ks=ks, mat=mat, boff=boff):
                        off = plan.slot[t] * SLOT + boff + mat * 2048
                        return [f"ds_read_b128 v[{buf}:{buf+3}], {lds_ref(V_RB if ks else V_RA, off)}"]
                    def mf(buf, k16=k16, mat=mat):
                        acc = G + 16 * mat
                        c = "0" if k16 == 0 else f"v[{acc}:{acc+15}]"
                        return [f"v_mfma_f32_32x32x16_bf16 v[{acc}:{acc+15}], a[{4*k16}:{4*k16+3}], v[{buf}:{buf+3}], {c}"]
                    steps.append(Step(t, rd, mf))
        return steps
    steps = s1_steps(0, [(kk, kk, 0) for kk in range(18)]) + s1_steps(1, [(18 + kk, kk, 0) for kk in range(18)])
    run_steps(a, steps, 0, 35, plan, dmas, dma_tok, OPT['dist'], 4)
    LB = a.newlabel("varB"); LJ = a.newlabel("join")
    st0 = a.state(); tok0 = dict(dma_tok)
    a(f"s_cmp_lg_u32 s{S_FW}, 0")
    a(f"s_cbranch_scc1 {LB}")
    horner(a, [0], V_FR)
    a(f"s_lshl_b32 s{S_T}, s{S_TW}, 13")
    a(f"v_add_u32 v{V_T}, s{S_T}, v{V_L16}")
    for j in range(8):
        a.ds(f"ds_write_b128 v{V_T}, v[{32+4*j}:{35+4*j}] offset:{SPILL*SLOT + j*1024}")
    a.wait(ds=a.ds_n)
    steps = s1_steps(2, [(36 + kk // 4, kk, (kk % 4) * 4096) for kk in range(18)])
    run_steps(a, steps, 36, 40, plan, dmas, dma_tok, OPT['dist'], 4)
    a("s_nop 7\ns_nop 7")
    horner(a, [1, 2], V_FR)
    a.wait(ds=a.ds_n)
    stA = a.state(); tokA = dict(dma_tok)
    a(f"s_branch {LJ}")
    a.label(LB)
    a.set_state(st0); dma_tok.clear(); dma_tok.update(tok0)
    a("s_nop 7\ns_nop 7")
    horner(a, [0, 1], V_FR)
    a.wait(ds=a.ds_n)
    run_steps(a, [], 36, 40, plan, dmas, dma_tok, OPT['dist'], 4)
    assert a.vm_n == stA[2] and dma_tok == tokA
    a.label(LJ)
    a.set_state((0, 0, stA[2], min(stA[3], a.vm_done)))
    ts.stamp()
    run_steps(a, [], 41, 41, plan, dmas, dma_tok, 0, 4)
    a(f"v_add_u32 v{V_T}, {E_OFF}, v{V_AR}")
    LS = a.newlabel("nc")
    a(f"s_cmp_gt_u32 s{S_W}, 4")
    a(f"s_cbranch_scc1 {LS}")
    E = V_FR
    for s_ in range(4):
        a(f"ds_read_b64 v[{E+2*s_}:{E+2*s_+1}], v{V_T} offset:{s_*288*8}")
    a("s_waitcnt lgkmcnt(0)")
    q = V_L16C
    cmul_add(a, 24, 25, q, q+1, E, E+1, E+2, E+3)
    cmul_add(a, 26, 27, q, q+1, 24, 25, E+4, E+5)
    cmul_add(a, 24, 25, q, q+1, 26, 27, E+6, E+7)
    a(f"""
    s_lshl_b32 s{S_T}, s{HALF}, 5
    s_add_u32 s{S_T}, s{S_T}, s{S_M}
    s_mul_i32 s{S_T}, s{S_T}, 2304
    s_add_u32 s{S_T}, s{S_T}, {WS_E}
    buffer_store_dwordx2 v[24:25], v{V_AR}, s[{S_WS}:{S_WS+3}], s{S_T} offen sc0 sc1
    """)
    a(f"""
    v_mul_f32 v26, v{q}, v{q}
    v_mul_f32 v27, v{q}, v{q+1}
    v_fma_f32 v26, -v{q+1}, v{q+1}, v26
    v_add_f32 v27, v27, v27
    v_mul_f32 v28, v26, v26
    v_mul_f32 v29, v26, v27
    v_fma_f32 v28, -v27, v27, v28
    v_add_f32 v29, v29, v29
    """)
    a.label(LS)
    a.wait_all()
    run_steps(a, [], 42, 42, plan, dmas, dma_tok, 0, 4)
    LS = a.newlabel("nl"); LP = a.newlabel("poll"); LG = a.newlabel("go"); LF = a.newlabel("nf")
    a(f"""
    s_cmp_gt_u32 s{S_W}, 4
    s_cbranch_scc1 {LS}
    s_lshl_b32 s{S_T}, s{HALF}, 7
    v_lshrrev_b32 v30, 2, v{V_L16}
    s_cmp_lg_u32 s{S_W}, 0
    s_cbranch_scc1 {LF}
    s_lshl_b32 s{S_T2}, s{S_M}, 2
    s_add_u32 s{S_T2}, s{S_T2}, s{S_T}
    v_mov_b32 v31, 1
    s_mov_b64 exec, 1
    buffer_store_dword v31, v30, s[{S_DBG}:{S_DBG+3}], s{S_T2} offen sc0 sc1
    s_mov_b64 exec, -1
    """)
    a.label(LF)
    a(f"""
    v_lshrrev_b32 v26, 4, v{V_L16}
    s_mov_b32 s{S_CNT}, 20000
    """)
    a.label(LP)
    a(f"""
    buffer_load_dword v31, v30, s[{S_DBG}:{S_DBG+3}], s{S_T} offen sc0 sc1
    s_waitcnt vmcnt(0)
    v_cmp_eq_u32 vcc, 0, v31
    v_cmp_gt_u32 s[{S_EX}:{S_EX+1}], s{S_M}, v26
    s_and_b64 vcc, vcc, s[{S_EX}:{S_EX+1}]
    s_cbranch_vccz {LG}
    s_sub_u32 s{S_CNT}, s{S_CNT}, 1
    s_cmp_eq_u32 s{S_CNT}, 0
    s_cbranch_scc1 {LG}
    s_sleep 2
    s_branch {LP}
    """)
    a.label(LG)
    a(f"""
    s_mul_i32 s{S_T}, s{HALF}, {32*2304}
    s_add_u32 s{S_T}, s{S_T}, {WS_E}
    s_add_u32 s{S_P0}, s{S_WS}, s{S_T}
    s_addc_u32 s{S_P0+1}, s{S_WS+1}, 0
    s_mul_i32 s{S_P0+2}, s{S_M}, 2304
    v_add_u32 v30, s{S_P0+2}, v{V_AR}
    """)
    for i in range(31):
        a(f"v_subrev_u32 v{30 + ((i+1)&1)}, 2304, v{30 + (i&1)}")
        a(f"buffer_load_dwordx2 a[{2*i}:{2*i+1}], v{30 + ((i+1)&1)}, s[{S_P0}:{S_P0+3}], 0 offen sc0 sc1")
    a("s_waitcnt vmcnt(0)")
    a("v_accvgpr_read_b32 v24, a60\nv_accvgpr_read_b32 v25, a61")
    cur = 24
    for i in range(29, -1, -1):
        a(f"v_accvgpr_read_b32 v30, a{2*i}\nv_accvgpr_read_b32 v31, a{2*i+1}")
        nx = 26 if cur == 24 else 24
        cmul_add(a, nx, nx+1, 28, 29, cur, cur+1, 30, 31)
        cur = nx
    assert cur == 24
    a(f"ds_write_b64 v{V_T}, v[24:25]")
    cmul_add(a, 26, 27, q, q+1, 24, 25, E, E+1)
    a(f"ds_write_b64 v{V_T}, v[26:27] offset:{288*8}")
    cmul_add(a, 28, 29, q, q+1, 26, 27, E+2, E+3)
    a(f"ds_write_b64 v{V_T}, v[28:29] offset:{2*288*8}")
    cmul_add(a, 30, 31, q, q+1, 28, 29, E+4, E+5)
    a(f"ds_write_b64 v{V_T}, v[30:31] offset:{3*288*8}")
    a.label(LS)
    a.wait_all()
    run_steps(a, [], 43, 43, plan, dmas, dma_tok, 0, 4)
    ts.stamp()
    a(f"""
    v_lshrrev_b32 v16, 4, v{V_L16}
    v_lshrrev_b32 v17, 5, v16
    v_lshlrev_b32 v17, 10, v17
    v_and_b32 v18, 0x13, v16
    v_bfe_u32 v19, v16, 2, 1
    v_lshl_add_u32 v18, v19, 3, v18
    v_bfe_u32 v19, v16, 3, 1
    v_lshl_add_u32 v18, v19, 2, v18
    v_lshl_add_u32 v17, v18, 5, v17
    s_lshl_b32 s{S_T}, s{S_TW}, 11
    s_lshl_b32 s{S_T2}, s{S_FW}, 12
    s_add_u32 s{S_T}, s{S_T}, s{S_T2}
    s_add_u32 s{S_T}, s{S_T}, {HB}
    v_add_u32 v{V_AW}, s{S_T}, v17
    v_add_u32 v{V_T1}, {9*4096}, v{V_AW}
    """)
    def scan(tiles):
        toks = []
        for j, t in enumerate(tiles):
            toks.append(a.ds(f"ds_read_b64 v[{16+8*j}:{17+8*j}], v{V_B1} offset:{t*4*32*8}"))
        a.wait(ds=toks[-1])
        cur = {t: (16 + 8*j, 17 + 8*j) for j, t in enumerate(tiles)}
        for k in range(16):
            for j, t in enumerate(tiles):
                G = V_G[t]; lr = V_LAM + 2*t; li = lr + 1; cr = V_COEF + 2*t; ci = cr + 1
                n = 16 + 8*j + 2 * ((k + 1) & 1)
                cmul_add(a, n, n+1, lr, li, cur[t][0], cur[t][1], G + k, G + 16 + k)
                cur[t] = (n, n + 1)
                a(f"v_mul_f32 v{G+k}, v{cr}, v{n}")
                a(f"v_mul_f32 v{G+16+k}, v{cr}, v{n+1}")
                a(f"v_fma_f32 v{G+k}, -v{ci}, v{n+1}, v{G+k}")
                a(f"v_fma_f32 v{G+16+k}, -v{ci}, v{n}, -v{G+16+k}")
        for j, t in enumerate(tiles):
            G = V_G[t]
            for comp in range(2):
                b = G + 16 * comp
                for u in range(8):
                    a(f"v_cvt_pk_bf16_f32 v{b+u}, v{b+2*u}, v{b+2*u+1}")
                base = V_T1 if comp else V_AW
                a.ds(f"ds_write_b128 v{base}, v[{b}:{b+3}] offset:{t*4*4096}")
                a.ds(f"ds_write_b128 v{base}, v[{b+4}:{b+7}] offset:{t*4*4096+16}")
    LB = a.newlabel("scB"); LJ = a.newlabel("scJ")
    a(f"s_cmp_lg_u32 s{S_FW}, 0")
    a(f"s_cbranch_scc1 {LB}")
    scan([1, 2])
    a.wait(ds=a.ds_n)
    a(f"s_lshl_b32 s{S_T}, s{S_TW}, 13")
    a(f"v_add_u32 v{V_T}, s{S_T}, v{V_L16}")
    for j in range(8):
        a.ds(f"ds_read_b128 v[{32+4*j}:{35+4*j}], v{V_T} offset:{SPILL*SLOT + j*1024}")
    scan([0])
    a.wait(ds=a.ds_n)
    a(f"s_branch {LJ}")
    a.label(LB)
    scan([0, 1])
    a.wait(ds=a.ds_n)
    a.label(LJ)
    a(f"""
    v_lshrrev_b32 v16, 4, v{V_L16}
    v_and_b32 v17, 15, v16
    v_lshlrev_b32 v17, 6, v17
    v_bfe_u32 v18, v16, 2, 2
    v_sub_u32 v18, 0, v18
    v_lshrrev_b32 v19, 4, v16
    v_xor_b32 v18, v18, v19
    v_and_b32 v18, 3, v18
    v_lshl_add_u32 v17, v18, 4, v17
    s_and_b32 s{S_T}, s{S_W}, 3
    s_lshl_b32 s{S_T}, s{S_T}, 10
    v_add_u32 v{V_RB}, s{S_T}, v17
    v_add_u32 v{V_RB+1}, 0x10000, v{V_RB}
    v_add_u32 v{V_RB+2}, 0x20000, v{V_RB}
    v_lshrrev_b32 v17, 5, v16
    v_lshlrev_b32 v17, 9, v17
    v_bfe_u32 v18, v16, 4, 1
    v_lshl_add_u32 v17, v18, 7, v17
    v_bfe_u32 v18, v16, 2, 2
    v_lshl_add_u32 v17, v18, 5, v17
    v_and_b32 v18, 3, v16
    v_lshl_add_u32 v17, v18, 3, v17
    s_lshl_b32 s{S_T}, s{S_TW}, 11
    s_add_u32 s{S_T}, s{S_T}, {HB}
    v_add_u32 v{V_RA}, s{S_T}, v17
    v_add_u32 v{V_RA+1}, 0x10000, v{V_RA}
    """)
    run_steps(a, [], 44, 44, plan, dmas, dma_tok, 0, 4)
    ts.stamp()
    order = []
    for s_ in range(41):
        for kp in range(4):
            e = 2 * s_ + (kp & 1)
            if e < 81: order.append((s_, kp, kp >> 1, e % 9, e // 9))
    order.sort(key=lambda o: (o[4], o[0], o[1]))
    assert len(order) == 162
    def aread(n, buf):
        s_, kp, comp, tile, db = order[n]
        off = plan.slot[41 + s_] * SLOT + kp * 4096
        return [f"ds_read_b128 v[{buf}:{buf+3}], {lds_ref(V_RB, off)}"]
    def breg(n, T):
        s_, kp, comp, tile, db = order[n]
        i = ((comp * 9 + tile) * 2 + T) * 4
        return f"a[{i}:{i+3}]"
    brd = {}
    def bload(n):
        s_, kp, comp, tile, db = order[n]
        for T in range(2):
            i = ((comp * 9 + tile) * 2 + T) * 4
            off = (comp * 9 + tile) * 4096 + T * 1024
            for h in range(2):
                brd[n] = a.ds(f"ds_read_b64_tr_b16 a[{i+2*h}:{i+2*h+1}], {lds_ref(V_RA, off + h*256)}")
    steps, last_store = phase2_steps(a, PY, 18, aread, breg, lambda n: order[n][0], 6, lambda n: [(lambda n=n: brd[n])] if n < 18 else None)
    bload(0); bload(1)
    for n in range(16):
        steps[n].fill.append(lambda n=n: bload(n + 2))
    run_steps(a, steps, PY, PY + 40, plan, dmas, dma_tok, OPT['dist'], 4)
    a("s_nop 7")
    last_store()
    ts.stamp()
    ts.flush()
    a("s_endpgm")

def gen_main(a):
    ts_on = OPT['ts']
    a(f"""
    s_load_dwordx2 s[{S_X}:{S_X+1}], s[0:1], 0
    s_load_dwordx2 s[{S_WS}:{S_WS+1}], s[0:1], 120
    v_lshrrev_b32 v1, 6, v0
    v_and_b32 v0, 63, v0
    s_cmp_ge_u32 s2, 256
    v_readfirstlane_b32 s{S_W}, v1
    s_cbranch_scc1 .Lexit
    s_and_b32 s{S_SL}, s2, 7
    s_lshr_b32 s{S_M}, s2, 3
    s_lshr_b32 s{S_TW}, s{S_W}, 2
    """)
    srd(a, S_X, 2359296); srd(a, S_WS, 0x10000000)
    a(f"s_cmp_ge_u32 s{S_SL}, 6")
    a("s_cbranch_scc1 .Lssm")
    ts = TS(a, ts_on)
    ts.stamp()
    gen_ffn(a, ts)
    a.label(".Lexit")
    a("s_endpgm")
    a.label(".Lssm")
    a.set_state((0, 0, 0, 0))
    ts = TS(a, ts_on)
    ts.stamp()
    gen_ssm(a, ts)

def gen_reduce(a):
    a(f"""
    s_load_dwordx2 s[4:5], s[0:1], 0
    s_load_dwordx2 s[8:9], s[0:1], 64
    s_load_dwordx2 s[12:13], s[0:1], 104
    s_load_dwordx2 s[16:17], s[0:1], 120
    v_lshrrev_b32 v1, 6, v0
    v_and_b32 v0, 63, v0
    s_cmp_ge_u32 s2, 576
    v_readfirstlane_b32 s20, v1
    s_cbranch_scc1 .Lrexit
    s_lshl_b32 s21, s2, 2
    s_add_u32 s21, s21, s20
    s_lshl_b32 s22, s21, 10
    v_lshlrev_b32 v1, 4, v0
    s_mov_b32 s6, 2359296
    s_mov_b32 s7, 0x00020000
    s_mov_b32 s10, 1152
    s_mov_b32 s11, 0x00020000
    s_mov_b32 s14, 4718592
    s_mov_b32 s15, 0x00020000
    s_mov_b32 s18, 0x10000000
    s_mov_b32 s19, 0x00020000
    s_waitcnt lgkmcnt(0)
    """)
    for sl in range(8):
        a(f"buffer_load_dwordx4 v[{8+4*sl}:{11+4*sl}], v1, s[16:19], s22 offen")
        if sl < 7: a(f"s_add_u32 s22, s22, {PART}")
    a(f"""
    s_mul_i32 s23, s21, 3641
    s_lshr_b32 s23, s23, 18
    s_mul_i32 s24, s23, 72
    s_sub_u32 s24, s21, s24
    s_lshr_b32 s25, s24, 3
    s_and_b32 s26, s24, 3
    s_bfe_u32 s27, s24, 0x10002
    s_lshl_b32 s23, s23, 6
    s_lshl_b32 s27, s27, 5
    s_add_u32 s23, s23, s27
    s_lshl_b32 s25, s25, 6
    s_lshl_b32 s26, s26, 4
    s_add_u32 s25, s25, s26
    v_and_b32 v2, 15, v0
    v_add_u32 v2, s23, v2
    v_lshrrev_b32 v3, 4, v0
    v_lshl_add_u32 v3, v3, 2, s25
    v_mul_u32_u24 v4, 576, v2
    v_add_u32 v4, v4, v3
    v_lshlrev_b32 v5, 1, v4
    v_lshlrev_b32 v4, 2, v4
    v_lshlrev_b32 v3, 1, v3
    v_lshlrev_b32 v2, 3, v2
    s_mov_b32 s28, {WS_STATS}
    s_mov_b32 s29, {16*1152}
    s_mov_b32 s30, {16*2304}
    buffer_load_dwordx2 v[40:41], v5, s[4:7], 0 offen
    buffer_load_dwordx2 v[42:43], v5, s[4:7], s29 offen
    buffer_load_dwordx2 v[44:45], v2, s[16:19], s28 offen
    buffer_load_dwordx2 v[46:47], v2, s[16:19], s28 offen offset:128
    buffer_load_dwordx2 v[48:49], v3, s[8:11], 0 offen
    s_waitcnt vmcnt(5)
    """)
    def unpack(dst, src):
        a(f"v_lshlrev_b32 v{dst}, 16, v{src}")
        a(f"v_and_b32 v{dst+1}, 0xffff0000, v{src}")
    for base, lo, hi in ((50, 0, 6), (58, 6, 8)):
        for j in range(4): unpack(base + 2*j, 8 + 4*lo + j)
        for sl in range(lo + 1, hi):
            for j in range(4):
                unpack(66 + 2*(j&1), 8 + 4*sl + j)
                a(f"v_pk_add_f32 v[{base+2*j}:{base+2*j+1}], v[{base+2*j}:{base+2*j+1}], v[{66+2*(j&1)}:{67+2*(j&1)}]")
    for j in range(4):
        f = 50 + 2*j
        a(f"v_cvt_pk_bf16_f32 v66, v{f}, v{f+1}")
        unpack(f, 66)
        for e in range(2):
            a(f"v_mul_f32 v{68+e}, 0xbfb8aa3b, v{f+e}")
        for e in range(2): a(f"v_exp_f32 v{68+e}, v{68+e}")
        a("s_nop 0")
        for e in range(2): a(f"v_add_f32 v{68+e}, 1.0, v{68+e}")
        for e in range(2): a(f"v_rcp_f32 v{68+e}, v{68+e}")
        a("s_nop 0")
        for e in range(2): a(f"v_mul_f32 v{f+e}, v{f+e}, v{68+e}")
        a(f"v_cvt_pk_bf16_f32 v66, v{f}, v{f+1}")
        unpack(f, 66)
    a("s_waitcnt vmcnt(0)")
    unpack(70, 48); unpack(72, 49)
    for T in range(2):
        xr = 40 + 2*T; st = 44 + 2*T
        unpack(74, xr); unpack(76, xr + 1)
        a(f"v_mul_f32 v66, v{st}, v{st+1}")
        for e in range(4): a(f"v_fma_f32 v{78+e}, v{74+e}, v{st+1}, -v66")
        for e in (0, 2):
            a(f"v_cvt_pk_bf16_f32 v67, v{78+e}, v{79+e}")
            unpack(78 + e, 67)
        for e in range(4): a(f"v_mul_f32 v{78+e}, v{78+e}, v{70+e}")
        for e in (0, 2):
            a(f"v_cvt_pk_bf16_f32 v67, v{78+e}, v{79+e}")
            unpack(78 + e, 67)
        o = 84 + 4*T
        for e in range(4):
            a(f"v_add_f32 v{78+e}, v{78+e}, v{58+4*T+e}")
            a(f"v_fma_f32 v{o+e}, v{78+e}, v{50+4*T+e}, v{74+e}")
        a(f"buffer_store_dwordx4 v[{o}:{o+3}], v4, s[12:15], {'0' if T == 0 else 's30'} offen")
    a.label(".Lrexit")
    a("s_endpgm")

def kdesc(name, nv, acc):
    return f""".p2align 6
.amdhsa_kernel {name}
  .amdhsa_next_free_vgpr {nv}
  .amdhsa_next_free_sgpr 102
  .amdhsa_accum_offset {acc}
  .amdhsa_group_segment_fixed_size 0
  .amdhsa_kernarg_size 128
  .amdhsa_user_sgpr_count 2
  .amdhsa_user_sgpr_kernarg_segment_ptr 1
  .amdhsa_system_sgpr_workgroup_id_x 1
.end_amdhsa_kernel
"""

OPT = dict(rot=1, maxper=2, dist=3, ts=0, tsreg=111, stpol="")
def build(path, **kw):
    OPT.update(kw)
    a = Prog(); gen_main(a)
    r = Prog(); gen_reduce(r)
    hdr = open("recurrent_scan__ssm_conv_s5__dense_activation_mish__prompt.s.ref").read().split("; Override")[0]
    txt = hdr + f"""; @launch kernel=main_kernel grid=(256,1,1) block=(512,1,1) lds={LDS_TOTAL}
; @launch kernel=red_kernel grid=(576,1,1) block=(256,1,1) lds=0
.amdgcn_target "amdgcn-amd-amdhsa--gfx950"
.text
.globl main_kernel
.p2align 8
.type main_kernel,@function
main_kernel:
{a.text()}
.globl red_kernel
.p2align 8
.type red_kernel,@function
red_kernel:
{r.text()}
.section .rodata,"a"
{kdesc("main_kernel", 256, 112)}{kdesc("red_kernel", 96, 96)}"""
    open(path, "w").write(txt)

if __name__ == "__main__":
    kw = {}
    for x in sys.argv[2:]:
        k, v = x.split("=")
        kw[k] = int(v) if v.lstrip("-").isdigit() else v
    build(sys.argv[1], **kw)
```

```python
import sys, struct
from asmlib import *

MISC = 147456
LDS_TOTAL = 163840
PART = 2359296
WS_STATS = 0x2400000
WS_E = 0x2500000
WS_TS = 64 << 20
XN = 65536
XP = 1168
def fhex(x): return "0x%08x" % struct.unpack("<I", struct.pack("<f", x))[0]

class Prog(Asm):
    def __init__(self):
        super().__init__()
        self.ds_n = 0; self.ds_done = 0
        self.vm_n = 0; self.vm_done = 0
    def ds(self, s):
        self(s); self.ds_n += 1; return self.ds_n
    def vm(self, s):
        self(s); self.vm_n += 1; return self.vm_n
    def wait(self, ds=None, vm=None):
        parts = []
        if vm is not None and vm > self.vm_done:
            n = min(self.vm_n - vm, 63); parts.append(f"vmcnt({n})"); self.vm_done = self.vm_n - n
        if ds is not None and ds > self.ds_done:
            n = min(self.ds_n - ds, 15); parts.append(f"lgkmcnt({n})"); self.ds_done = self.ds_n - n
        if parts: self("s_waitcnt " + " ".join(parts))
    def wait_all(self):
        self("s_waitcnt vmcnt(0) lgkmcnt(0)"); self.vm_done = self.vm_n; self.ds_done = self.ds_n
    def state(self): return (self.ds_n, self.ds_done, self.vm_n, self.vm_done)
    def set_state(self, s): self.ds_n, self.ds_done, self.vm_n, self.vm_done = s

S_X = 4; S_WA = 8; S_WB = 12; S_WS = 16; S_AUX = 20; S_AUX2 = 24; S_DBG = 28
S_P0 = 32; S_P1 = 36; S_P2 = 40
S_W = 44; S_TW = 45; S_HW = 46; S_M = 47; S_SL = 48
S_T = 49; S_T2 = 50; S_T3 = 51
S_LDSW = 52; S_LDST = 53
S_A = 54; S_A2 = 55; S_ST = 56; S_Q = 57
S_C = 58
S_XS = 64
S_D = 67
S_DB = 70
S_EX = 80
S_CNT = 82
S_DB2 = 84
S_TS = 94
S_L2E = 98
V_T = 0; V_DMA1 = 1; V_DMA2 = 2; V_RA = 3; V_RB = 6; V_RP = 9; V_L16 = 12; V_B1 = 13; V_AW = 14; V_AR = 15
V_FR = 16; V_ACC0 = 32; V_ACC1 = 48; V_TMP = 64; V_H = 72
P_ROW = 104; P_C = 105; P_WA = 106; P_RA = 107

def srd(a, s, size):
    a(f"s_mov_b32 s{s+2}, {size}")
    a(f"s_mov_b32 s{s+3}, 0x00020000")

class TS:
    def __init__(self, a, on, regs): self.a = a; self.on = on; self.n = 0; self.r = regs
    def stamp(self, regs=None):
        if not self.on: return
        a = self.a; i = self.n; self.n += 1
        r = regs or self.r
        a(f"s_memrealtime s[{S_TS}:{S_TS+1}]")
        a(f"s_memtime s[{S_TS+2}:{S_TS+3}]")
        a("s_waitcnt lgkmcnt(0)"); a.ds_done = a.ds_n
        a(f"""
        v_mov_b32 v{r}, s{S_TS}
        v_mov_b32 v{r+1}, s{S_TS+2}
        s_lshl_b32 s{S_TS}, s2, 10
        s_lshl_b32 s{S_TS+1}, s{S_W}, 7
        s_add_u32 s{S_TS}, s{S_TS}, s{S_TS+1}
        s_add_u32 s{S_TS}, s{S_TS}, {WS_TS + 8*i}
        s_mov_b64 exec, 1
        """)
        a.vm(f"buffer_store_dwordx2 v[{r}:{r+1}], off, s[{S_WS}:{S_WS+3}], s{S_TS}")
        a("s_mov_b64 exec, -1")

class SlotPlan:
    def __init__(self, first, last, reserved, nslot, maxper=2, npro=None):
        self.first = first; self.last = last
        self.slot = {}; self.issue = {}
        busy = {k: -2 for k in range(nslot)}
        t = 0; n = len(first); p = -1
        while t < n and p <= max(last):
            cnt = 0
            while t < n and (cnt < maxper or p == -1):
                cand = [k for k in range(nslot) if busy[k] < p and
                        all(not (k == rs and rf <= last[t] and rl >= p) for rs, rf, rl in reserved)]
                if not cand: break
                k = cand[0]
                self.slot[t] = k; busy[k] = last[t]
                self.issue.setdefault(p, []).append(t)
                assert p <= first[t] - 2 or p == -1, f"stage {t} issued too late: period {p} first use {first[t]}"
                t += 1; cnt += 1
            p += 1
        assert t == n, "not all stages issued"

def lds_ref(base_v, off):
    return f"v{base_v + (off >> 16)} offset:{off & 0xffff}"

def x_loads(a):
    a(f"""
    v_lshrrev_b32 v{P_ROW}, 3, v0
    v_and_b32 v{P_C}, 7, v0
    v_mul_u32_u24 v{P_WA}, 1152, v{P_ROW}
    v_lshl_add_u32 v{P_WA}, v{P_C}, 4, v{P_WA}
    s_mul_i32 s{S_T}, s{S_M}, 147456
    s_mul_i32 s{S_T2}, s{S_W}, 9216
    s_add_u32 s{S_T}, s{S_T}, s{S_T2}
    s_add_u32 s{S_T2}, s{S_T}, 73728
    """)
    toks = []
    for r in range(2):
        for i in range(9):
            tok = a.vm(f"buffer_load_dwordx4 v[{16+36*r+4*i}:{19+36*r+4*i}], v{P_WA}, s[{S_X}:{S_X+3}], s{S_T2 if r else S_T} offen offset:{128*i}")
        toks.append(tok)
    return toks

def ln_compute(a, X, r, ssm):
    S1 = 88; S2 = 89; T = 90
    a(f"v_mov_b32 v{T}, 0x3f803f80")
    a(f"v_mov_b32 v{S1}, 0\nv_mov_b32 v{S2}, 0\nv_mov_b32 v{T+1}, 0\nv_mov_b32 v{T+2}, 0")
    for i in range(36):
        s1 = S1 if i % 2 == 0 else T + 1
        s2 = S2 if i % 2 == 0 else T + 2
        a(f"v_dot2_f32_bf16 v{s1}, v{X+i}, v{T}, v{s1}")
        a(f"v_dot2_f32_bf16 v{s2}, v{X+i}, v{X+i}, v{s2}")
    a("s_nop 3")
    a(f"v_add_f32 v{S1}, v{S1}, v{T+1}\nv_add_f32 v{S2}, v{S2}, v{T+2}")
    for dpp in ("quad_perm:[1,0,3,2]", "quad_perm:[2,3,0,1]", "row_half_mirror"):
        a("s_nop 1")
        a(f"v_add_f32_dpp v{S1}, v{S1}, v{S1} {dpp} row_mask:0xf bank_mask:0xf")
        a(f"v_add_f32_dpp v{S2}, v{S2}, v{S2} {dpp} row_mask:0xf bank_mask:0xf")
    inv = "0x3ae38e39"
    a(f"""
    v_mul_f32 v{S1}, {inv}, v{S1}
    v_mul_f32 v{S2}, {inv}, v{S2}
    v_fma_f32 v{S2}, -v{S1}, v{S1}, v{S2}
    v_max_f32 v{S2}, 0, v{S2}
    v_cvt_pk_bf16_f32 v{T}, v{S1}, v{S2}
    v_lshlrev_b32 v{S1}, 16, v{T}
    v_and_b32 v{S2}, 0xffff0000, v{T}
    v_add_f32 v{S2}, 0x3727c5ac, v{S2}
    v_cvt_pk_bf16_f32 v{T}, v{S2}, v{S2}
    v_lshlrev_b32 v{S2}, 16, v{T}
    v_sqrt_f32 v{S2}, v{S2}
    s_nop 0
    v_cvt_pk_bf16_f32 v{T}, v{S2}, v{S2}
    v_lshlrev_b32 v{S2}, 16, v{T}
    v_rcp_f32 v{T+2}, v{S2}
    s_nop 0
    v_mul_f32 v{T+4}, v{S1}, v{T+2}
    v_sub_f32 v{T+4}, 0, v{T+4}
    """)
    RI = T + 2; NM = T + 4
    if ssm:
        L = a.newlabel("st")
        a(f"""
        s_cmp_lg_u32 s{S_SL}, 12
        s_cbranch_scc1 {L}
        v_mov_b32 v{T+6}, v{S1}
        v_mov_b32 v{T+7}, v{RI}
        v_lshlrev_b32 v{T+8}, 3, v{P_ROW}
        v_cmp_eq_u32 vcc, 0, v{P_C}
        s_lshl_b32 s{S_T}, s{S_M}, 10
        s_lshl_b32 s{S_T2}, s{S_W}, 6
        s_add_u32 s{S_T}, s{S_T}, s{S_T2}
        s_add_u32 s{S_T}, s{S_T}, {WS_STATS + 512*r}
        s_and_saveexec_b64 s[{S_EX}:{S_EX+1}], vcc
        buffer_store_dwordx2 v[{T+6}:{T+7}], v{T+8}, s[{S_WS}:{S_WS+3}], s{S_T} offen
        s_mov_b64 exec, s[{S_EX}:{S_EX+1}]
        s_waitcnt vmcnt(0)
        """)
        a.label(L)
    U = 96
    for i in range(36):
        rr = X + i; u = U + 2 * (i % 4)
        a(f"v_lshlrev_b32 v{u}, 16, v{rr}")
        a(f"v_and_b32 v{u+1}, 0xffff0000, v{rr}")
        a(f"v_pk_fma_f32 v[{u}:{u+1}], v[{u}:{u+1}], v[{RI}:{RI+1}], v[{NM}:{NM+1}] op_sel_hi:[1,0,0]")
        a(f"v_cvt_pk_bf16_f32 v{rr}, v{u}, v{u+1}")

def layernorm(a, xtoks, ssm):
    a(f"""
    s_mul_i32 s{S_T}, s{S_W}, {8*XP}
    s_add_u32 s{S_T}, s{S_T}, {XN}
    v_mul_u32_u24 v{P_WA}, {XP}, v{P_ROW}
    v_lshl_add_u32 v{P_WA}, v{P_C}, 4, v{P_WA}
    v_add_u32 v{P_WA}, s{S_T}, v{P_WA}
    s_and_b32 s{S_T}, s{S_TW}, 1
    s_mul_i32 s{S_T}, s{S_T}, {32*XP}
    s_add_u32 s{S_T}, s{S_T}, {XN}
    """)
    if ssm:
        a(f"""
        v_bfe_u32 v{P_RA}, v0, 2, 2
        v_lshlrev_b32 v{P_RA}, 3, v{P_RA}
        v_and_b32 v108, 3, v0
        v_add_u32 v{P_RA}, v{P_RA}, v108
        v_mul_u32_u24 v{P_RA}, {XP}, v{P_RA}
        v_lshrrev_b32 v108, 4, v0
        v_lshl_add_u32 v{P_RA}, v108, 4, v{P_RA}
        v_add_u32 v{P_RA}, s{S_T}, v{P_RA}
        """)
    else:
        a(f"""
        v_and_b32 v{P_RA}, 31, v0
        v_mul_u32_u24 v{P_RA}, {XP}, v{P_RA}
        v_lshrrev_b32 v108, 5, v0
        v_lshl_add_u32 v{P_RA}, v108, 4, v{P_RA}
        v_add_u32 v{P_RA}, s{S_T}, v{P_RA}
        """)
    def wr(X):
        for i in range(9):
            a(f"ds_write_b128 v{P_WA}, v[{X+4*i}:{X+4*i+3}] offset:{128*i}")
        a("s_waitcnt lgkmcnt(0)")
        a("s_barrier")
    def rd(r):
        L = a.newlabel("xr")
        a(f"s_lshr_b32 s{S_T}, s{S_TW}, 1")
        a(f"s_cmp_lg_u32 s{S_T}, {r}")
        a(f"s_cbranch_scc1 {L}")
        for j in range(36):
            off = ((j >> 1) * 64 + (j & 1) * 4 * XP) if ssm else 32 * j
            a(f"ds_read_b128 a[{4*j}:{4*j+3}], v{P_RA} offset:{off}")
        a.label(L)
    a.wait(ds=a.ds_n)
    a.wait(vm=xtoks[0])
    ln_compute(a, 16, 0, ssm)
    wr(16)
    rd(0)
    a.wait(vm=xtoks[1])
    ln_compute(a, 52, 1, ssm)
    a("s_waitcnt lgkmcnt(0)")
    a("s_barrier")
    wr(52)
    rd(1)
    a("s_waitcnt lgkmcnt(0)")
    a.ds_done = a.ds_n

def dma_emit(a, ldsreg, ldsoff, vreg, srdreg, sregs, const, mask=None):
    a(f"s_add_u32 m0, s{ldsreg}, {ldsoff}")
    const &= 0xffffffff
    if len(sregs) == 1:
        a(f"s_add_u32 s{S_T}, s{sregs[0]}, {const}")
    else:
        a(f"s_add_u32 s{S_T}, s{sregs[0]}, s{sregs[1]}")
        if const: a(f"s_add_u32 s{S_T}, s{S_T}, {const}")
    if OPT['nodma']: return a.vm_n
    if mask: a(f"s_mov_b64 exec, {mask}")
    t = a.vm(f"buffer_load_dwordx4 v{vreg}, s[{srdreg}:{srdreg+3}], s{S_T} offen lds")
    if mask: a("s_mov_b64 exec, -1")
    return t

def mish_ops(acc, out):
    ops = []
    for g in range(4):
        P = []
        for e in range(4):
            h = acc + 4 * g + e; t = V_TMP + 2 * e; u = t + 1
            P.append([f"v_mul_f32 v{t}, s{S_L2E}, v{h}",
                      f"v_exp_f32 v{t}, v{t}",
                      f"v_fmaak_f32 v{u}, -0.5, v{t}, 0xbf800000",
                      f"v_fmaak_f32 v{u}, v{t}, v{u}, 0xbf800000",
                      f"v_rcp_f32 v{u}, v{u}",
                      f"v_fmac_f32 v{h}, v{h}, v{u}"])
        for k in range(6):
            ops += [P[e][k] for e in range(4)]
        for e in range(2):
            ops.append(f"v_cvt_pk_bf16_f32 v{out + 2*g + e}, v{acc + 4*g + 2*e}, v{acc + 4*g + 2*e + 1}")
    if OPT['nomish']: ops = [o for o in ops if 'cvt' in o]
    return ops

class Step:
    def __init__(self, period, stage, reads, mfmas, pre=None):
        self.period = period; self.stage = stage
        self.reads = reads; self.mfmas = mfmas
        self.pre = pre or []
        self.tok = None
        self.fill = []

def run_steps(a, steps, p_first, p_last, plan, dmas, dma_tok, dist, nbuf=4, end_ds=None, start_idx=0, post=None):
    idx = start_idx
    n = len(steps)
    def issue(i):
        if i < n and steps[i].tok is None:
            t = None
            for r in steps[i].reads(V_FR + 4 * (i % nbuf)): t = a.ds(r)
            steps[i].tok = t
    def dofill(fl):
        for f in fl:
            if callable(f): f()
            else: a(f)
    deferred = []
    for p in range(p_first, p_last + 1):
        mine = []
        while idx < n and steps[idx].period == p:
            mine.append(idx); idx += 1
        dq = []
        for t in plan.issue.get(p, []):
            dq += [(t, f) for f in dmas[t](plan.slot[t])]
        def endp():
            need = [dma_tok[t] for t in range(len(plan.first)) if plan.first[t] <= p + 2 and t in dma_tok]
            a.wait(vm=max(need) if need else None, ds=(end_ds(p) if end_ds else None))
            if not OPT['nobar']: a("s_barrier")
            if post: post(p)
        for j, i in enumerate(mine):
            st = steps[i]
            lastp = OPT['early'] and j == len(mine) - 1 and len(mine) > 1
            for k in range(dist - (1 if deferred else 0)): issue(i + k)
            w = st.tok
            for f in st.pre: w = max(w, f())
            a.wait(ds=w)
            ms = st.mfmas(V_FR + 4 * (i % nbuf))
            if OPT['prio']: a(f"s_setprio {OPT['prio']}")
            a(ms[0])
            if lastp:
                for m_ in ms[1:]: a(m_)
                if OPT['prio']: a("s_setprio 0")
                endp()
                if p == p_last:
                    issue(i + dist); dofill(st.fill)
                else:
                    deferred = [i]
                continue
            if len(ms) == 1 and OPT['prio']: a("s_setprio 0")
            for d_ in deferred: issue(d_ + dist)
            issue(i + dist)
            for m_ in ms[1:]: a(m_)
            if len(ms) > 1 and OPT['prio']: a("s_setprio 0")
            for d_ in deferred: dofill(steps[d_].fill)
            deferred = []
            dofill(st.fill)
            rem = len(mine) - j - (1 if OPT['early'] else 0)
            per = -(-len(dq) // max(1, rem)) if dq else 0
            for _ in range(per):
                t, f = dq.pop(0); dma_tok[t] = f()
        if not (OPT['early'] and len(mine) > 1):
            for d_ in deferred:
                issue(d_ + dist); dofill(steps[d_].fill)
            deferred = []
            for t, f in dq: dma_tok[t] = f()
            endp()
        else:
            assert not dq
    return idx

def store_tile(a, db):
    acc = V_ACC0 + 16 * (db & 1)
    def f():
        for j in range(8):
            a(f"v_cvt_pk_bf16_f32 v{acc+j}, v{acc+2*j}, v{acc+2*j+1}")
        a(f"s_lshl_b32 s{S_T2}, s{S_DB+db}, 7")
        a(f"s_add_u32 s{S_T2}, s{S_T2}, s{S_ST}")
        for h in range(2):
            a.vm(f"buffer_store_dwordx4 v[{acc+4*h}:{acc+4*h+3}], v{V_L16}, s[{S_WS}:{S_WS+3}], s{S_T2} offen offset:{1024*h} {OPT['stpol']}")
    return f

def rot_setup(a, scale2=None):
    a(f"""
    s_cmp_ge_u32 s{S_M}, 9
    s_cselect_b32 s{S_T}, 9, 0
    s_sub_u32 s{S_T}, s{S_M}, s{S_T}
    """)
    if not OPT['rot']: a(f"s_mov_b32 s{S_T}, 0")
    for j in range(9):
        a(f"s_lshl_b32 s{S_DB+j}, s{S_T}, 7")
        if scale2: a(f"s_mul_i32 s{S_DB2+j}, s{S_T}, {scale2}")
        a(f"s_add_u32 s{S_T}, s{S_T}, 1")
        a(f"s_cmp_ge_u32 s{S_T}, 9")
        a(f"s_cselect_b32 s{S_T}, 0, s{S_T}")
    a(f"""
    s_mul_i32 s{S_ST}, s{S_SL}, {PART}
    s_mul_i32 s{S_T}, s{S_M}, 147456
    s_add_u32 s{S_ST}, s{S_ST}, s{S_T}
    s_lshl_b32 s{S_T}, s{S_W}, 11
    s_add_u32 s{S_ST}, s{S_ST}, s{S_T}
    v_lshlrev_b32 v{V_L16}, 4, v0
    """)

def first_last(steps, nstage):
    first = [None] * nstage; last = [None] * nstage
    for s in steps:
        t = s.stage
        first[t] = s.period if first[t] is None else min(first[t], s.period)
        last[t] = s.period if last[t] is None else max(last[t], s.period)
    return first, last

def gen_ffn(a, ts):
    SLOT = 16384
    a(f"""
    s_load_dwordx2 s[{S_WA}:{S_WA+1}], s[0:1], 80
    s_load_dwordx2 s[{S_WB}:{S_WB+1}], s[0:1], 96
    s_load_dwordx2 s[{S_AUX}:{S_AUX+1}], s[0:1], 88
    s_mov_b32 s{S_L2E}, 0x3fb8aa3b
    s_mov_b32 s{S_L2E+1}, 0x3fb8aa3b
    s_waitcnt lgkmcnt(0)
    """)
    srd(a, S_WA, 5308416); srd(a, S_WB, 5308416); srd(a, S_AUX, 9216)
    xtoks = x_loads(a)
    a(f"""
    v_lshrrev_b32 v108, 5, v0
    v_bfe_u32 v109, v0, 2, 2
    v_lshl_add_u32 v108, v108, 2, v109
    v_bfe_u32 v109, v0, 4, 1
    v_lshlrev_b32 v109, 6, v109
    v_and_b32 v110, 3, v0
    v_lshl_add_u32 v109, v110, 4, v109
    v_mul_u32_u24 v{V_DMA1}, 9216, v108
    v_add_u32 v{V_DMA1}, v{V_DMA1}, v109
    v_mul_u32_u24 v{V_DMA2}, 1152, v108
    v_add_u32 v{V_DMA2}, v{V_DMA2}, v109
    """)
    a(f"""
    s_mul_i32 s{S_T}, s{S_M}, 43
    s_lshr_b32 s{S_T}, s{S_T}, 8
    s_mul_i32 s{S_T}, s{S_T}, 6
    s_sub_u32 s{S_T}, s{S_M}, s{S_T}
    s_mul_i32 s{S_A}, s{S_SL}, 768
    s_mul_i32 s{S_T2}, s{S_W}, {16*9216}
    s_add_u32 s{S_A}, s{S_A}, s{S_T2}
    s_mul_i32 s{S_A2}, s{S_SL}, {384*1152}
    s_mul_i32 s{S_T2}, s{S_TW}, {16*1152}
    s_add_u32 s{S_A2}, s{S_A2}, s{S_T2}
    s_lshl_b32 s{S_LDSW}, s{S_W}, 11
    """)
    if not OPT['rot']: a(f"s_mov_b32 s{S_T}, 0")
    for c in range(6):
        a(f"s_lshl_b32 s{S_T2}, s{S_T}, 7")
        a(f"s_add_u32 s{S_C+c}, s{S_A}, s{S_T2}")
        a(f"s_mul_i32 s{S_T2}, s{S_T}, {64*1152}")
        a(f"s_add_u32 s{S_T2}, s{S_A2}, s{S_T2}")
        if c % 2 == 0:
            a(f"s_mov_b32 s{S_D+c//2}, s{S_T2}")
        else:
            a(f"s_cmp_eq_u32 s{S_HW}, 1")
            a(f"s_cselect_b32 s{S_D+c//2}, s{S_T2}, s{S_D+c//2}")
            a(f"s_add_u32 s{S_T2}, s{S_C+c-1}, {32*147456}")
            a(f"s_sub_u32 s{S_T3}, s{S_C+c}, {4*147456}")
            a(f"s_cmp_eq_u32 s{S_HW}, 1")
            a(f"s_cselect_b32 s{S_XS+c//2}, s{S_T3}, s{S_T2}")
        a(f"s_add_u32 s{S_T}, s{S_T}, 1")
        a(f"s_cmp_ge_u32 s{S_T}, 6")
        a(f"s_cselect_b32 s{S_T}, 0, s{S_T}")
    steps = []
    b1tok = {}; brd = {}; wtok = {}
    for n in range(216):
        c, kk = n // 36, n % 36
        t = n // 8
        acc = V_ACC0 + 16 * (c & 1)
        def rd(buf, t=t, n=n):
            off = plan.slot[t] * SLOT + (n % 8) * 2048
            return [f"ds_read_b64_tr_b16 v[{buf+2*h}:{buf+2*h+1}], {lds_ref(V_RA, off + h*512)}" for h in range(2)]
        def mf(buf, acc=acc, kk=kk):
            return [f"v_mfma_f32_32x32x16_bf16 v[{acc}:{acc+15}], v[{buf}:{buf+3}], a[{4*kk}:{4*kk+3}], v[{acc}:{acc+15}]"]
        steps.append(Step(t, t, rd, mf, [(lambda c=c: b1tok[c])] if kk == 0 else None))
    def breg(own, c, kh):
        if own and c < 5: r = V_H + 8 * c + 4 * kh; return f"v[{r}:{r+3}]"
        r = (48 if own else 8 * c) + 4 * kh
        return f"a[{r}:{r+3}]"
    for db in range(9):
        acc = V_ACC0 + 16 * (db & 1)
        if db == 0:
            order = [(1, c) for c in range(5)] + [(0, c) for c in range(5)] + [(1, 5), (0, 5)]
        else:
            order = []
            for s in range(3): order += [(1, 2*s), (1, 2*s+1), (0, 2*s), (0, 2*s+1)]
        k = 0
        for own, c in order:
            for kh in range(2):
                t = 27 + db * 3 + c // 2
                def rd(buf, t=t, own=own, c=c, kh=kh):
                    off = plan.slot[t] * SLOT + (c & 1) * 8192 + kh * 2048
                    return [f"ds_read_b64_tr_b16 v[{buf+2*h}:{buf+2*h+1}], {lds_ref(V_RB if own else V_RP, off + h*1024)}" for h in range(2)]
                def mf(buf, acc=acc, k=k, own=own, c=c, kh=kh):
                    cc = "0" if k == 0 else f"v[{acc}:{acc+15}]"
                    return [f"v_mfma_f32_32x32x16_bf16 v[{acc}:{acc+15}], v[{buf}:{buf+3}], {breg(own, c, kh)}, {cc}"]
                pre = [(lambda own=own, c=c: brd[(own, c)])] if (db == 0 and (not own or c == 5)) else None
                steps.append(Step(27 + db * 3 + k // 8, t, rd, mf, pre))
                k += 1
    first, last = first_last(steps, 54)
    es = [0, 1, 0, 1, 0, 1]
    wp = [22, 23, 24, 25, 26, 28]
    reserved = [(es[c], wp[c], wp[c] + 1) for c in range(6)] + [(k, -1, -1) for k in range(4, 9)]
    plan = SlotPlan(first, last, reserved, 9, maxper=OPT['maxper'])
    dmas = {}
    for t in range(27):
        if t in (4, 13, 22):
            dmas[t] = (lambda slot, t=t: [(lambda i=i: dma_emit(a, S_LDSW, slot*SLOT + i*1024, V_DMA1, S_WA, [S_XS + t//9], 8*i*9216)) for i in range(2)])
        else:
            c = (8 * t) // 36
            dmas[t] = (lambda slot, t=t, c=c: [(lambda i=i: dma_emit(a, S_LDSW, slot*SLOT + i*1024, V_DMA1, S_WA, [S_C+c], (8*t - 36*c)*147456 + 8*i*9216)) for i in range(2)])
    for t in range(27, 54):
        db, s = (t - 27) // 3, (t - 27) % 3
        dmas[t] = (lambda slot, db=db, s=s: [(lambda i=i: dma_emit(a, S_LDSW, slot*SLOT + i*1024, V_DMA2, S_WB, [S_D+s, S_DB+db], i*9216)) for i in range(2)])
    dma_tok = {}
    for t in plan.issue[-1]:
        for f in dmas[t](plan.slot[t]): dma_tok[t] = f()
    a(f"""
    s_lshl_b32 s{S_T}, s{S_W}, 6
    v_add_u32 v108, s{S_T}, v0
    v_lshlrev_b32 v109, 2, v108
    v_lshlrev_b32 v110, 3, v108
    v_add_u32 v110, {MISC}, v110
    v_cmp_gt_u32 vcc, 192, v108
    s_mul_i32 s{S_T}, s{S_SL}, 768
    s_and_saveexec_b64 s[{S_EX}:{S_EX+1}], vcc
    """)
    btok = a.vm(f"buffer_load_dword v111, v109, s[{S_AUX}:{S_AUX+3}], s{S_T} offen")
    a(f"s_mov_b64 exec, s[{S_EX}:{S_EX+1}]")
    rot_setup(a)
    a(f"""
    v_bfe_u32 v100, v0, 2, 2
    v_lshlrev_b32 v100, 6, v100
    v_bfe_u32 v101, v0, 4, 1
    v_lshl_add_u32 v100, v101, 5, v100
    v_and_b32 v101, 3, v0
    v_lshl_add_u32 v100, v101, 3, v100
    s_lshl_b32 s{S_T}, s{S_HW}, 8
    v_add_u32 v100, s{S_T}, v100
    v_lshrrev_b32 v101, 5, v0
    v_lshl_add_u32 v{V_RA}, v101, 10, v100
    v_add_u32 v{V_RA+1}, 0x10000, v{V_RA}
    v_add_u32 v{V_RA+2}, 0x20000, v{V_RA}
    v_lshl_add_u32 v{V_RB}, v101, 9, v100
    s_lshl_b32 s{S_T}, s{S_HW}, 12
    v_add_u32 v{V_RB}, s{S_T}, v{V_RB}
    v_add_u32 v{V_RB+1}, 0x10000, v{V_RB}
    v_add_u32 v{V_RB+2}, 0x20000, v{V_RB}
    v_xor_b32 v{V_RP}, 0x1000, v{V_RB}
    v_xor_b32 v{V_RP+1}, 0x1000, v{V_RB+1}
    v_xor_b32 v{V_RP+2}, 0x1000, v{V_RB+2}
    v_lshlrev_b32 v101, 4, v101
    s_lshl_b32 s{S_T}, s{S_HW}, 7
    s_add_u32 s{S_T}, s{S_T}, {MISC}
    v_add_u32 v{V_B1}, s{S_T}, v101
    v_add_u32 v{V_AW}, s{S_LDSW}, v{V_L16}
    v_xor_b32 v{V_AR}, 0x2000, v{V_AW}
    """)
    a.wait(vm=btok)
    a(f"""
    v_lshlrev_b32 v100, 16, v111
    v_and_b32 v101, 0xffff0000, v111
    s_and_saveexec_b64 s[{S_EX}:{S_EX+1}], vcc
    """)
    a.ds("ds_write_b64 v110, v[100:101]")
    a(f"s_mov_b64 exec, s[{S_EX}:{S_EX+1}]")
    layernorm(a, xtoks, False)
    need = [dma_tok[t] for t in dma_tok if first[t] <= 1]
    a.wait(vm=max(need))
    a("s_barrier")
    ts.stamp()
    def b1rd(c):
        acc = V_ACC0 + 16 * (c & 1)
        def f():
            a(f"s_sub_u32 s{S_T2}, s{S_C+c}, s{S_A}")
            a(f"s_lshl_b32 s{S_T2}, s{S_T2}, 1")
            a(f"v_add_u32 v{V_T}, s{S_T2}, v{V_B1}")
            for q in range(4):
                b1tok[c] = a.ds(f"ds_read_b128 v[{acc+4*q}:{acc+4*q+3}], v{V_T} offset:{32*q}")
        return f
    def actw(c):
        hreg = (V_H + 8 * c) if c < 5 else V_ACC1
        def f():
            a.ds(f"ds_write_b128 v{V_AW}, v[{hreg}:{hreg+3}] offset:{es[c]*SLOT}")
            wtok[c] = a.ds(f"ds_write_b128 v{V_AW}, v[{hreg+4}:{hreg+7}] offset:{es[c]*SLOT + 1024}")
        return f
    def actr(own, c):
        def f():
            for kh in range(2):
                brd[(own, c)] = a.ds(f"ds_read_b128 {breg(own, c, kh)}, v{V_AW if own else V_AR} offset:{es[c]*SLOT + 1024*kh}")
        return f
    for c in range(6):
        ops = mish_ops(V_ACC0 + 16 * (c & 1), (V_H + 8 * c) if c < 5 else V_ACC1)
        idxs = [(c + 1) * 36 + k for k in range(2, 33)] if c < 5 else [216 + k for k in range(2, 14)]
        per = len(ops) / len(idxs)
        for j, i in enumerate(idxs):
            steps[i].fill += ops[int(round(j * per)):int(round((j + 1) * per))]
    for c in range(1, 6):
        steps[c * 36 - 2].fill.append(b1rd(c))
    for c in range(6):
        steps[wp[c] * 8 + 6].fill.append(actw(c))
        steps[(wp[c] + 1) * 8].fill.append(actr(0, c))
    steps[29 * 8].fill.append(actr(1, 5))
    for db in range(8):
        steps[216 + (db + 1) * 24 + 2].fill.append(store_tile(a, db))
    def end_ds(p):
        w = [wtok[c] for c in range(6) if wp[c] == p]
        return max(w) if w else None
    b1rd(0)()
    idx = run_steps(a, steps, 0, 26, plan, dmas, dma_tok, OPT['dist'], end_ds=end_ds)
    ts.stamp()
    run_steps(a, steps, 27, 53, plan, dmas, dma_tok, OPT['dist'], end_ds=end_ds, start_idx=idx)
    a("s_nop 7\ns_nop 7")
    store_tile(a, 8)()
    ts.stamp()
    a("s_endpgm")

def consts(a, raw, out_l, out_c, out_l8, t):
    lre, lim, ldt = raw, raw + 1, raw + 2
    a(f"""
    v_lshlrev_b32 v{lre}, 16, v{lre}
    v_lshlrev_b32 v{lim}, 16, v{lim}
    v_lshlrev_b32 v{ldt}, 16, v{ldt}
    v_mul_f32 v{ldt}, 0x3fb8aa3b, v{ldt}
    v_exp_f32 v{ldt}, v{ldt}
    s_nop 0
    v_cvt_pk_bf16_f32 v{ldt}, v{ldt}, v{ldt}
    v_lshlrev_b32 v{ldt}, 16, v{ldt}
    v_mul_f32 v{t+4}, v{ldt}, v{lre}
    v_mul_f32 v{t+5}, v{ldt}, v{lim}
    """)
    for o, scale in ((out_l, 1.0), (out_l8, 8.0)):
        a(f"""
        v_mul_f32 v{t}, {fhex(1.4426950408889634*scale)}, v{t+4}
        v_mul_f32 v{t+1}, {fhex(0.15915494309189535*scale)}, v{t+5}
        v_exp_f32 v{t}, v{t}
        v_cos_f32 v{t+2}, v{t+1}
        v_sin_f32 v{t+3}, v{t+1}
        s_nop 0
        v_mul_f32 v{o}, v{t}, v{t+2}
        v_mul_f32 v{o+1}, v{t}, v{t+3}
        """)
    a(f"""
    v_add_f32 v{t}, -1.0, v{out_l}
    v_mul_f32 v{t+1}, v{lre}, v{lre}
    v_fma_f32 v{t+1}, v{lim}, v{lim}, v{t+1}
    v_rcp_f32 v{t+1}, v{t+1}
    v_mul_f32 v{t+2}, v{t}, v{lre}
    v_fma_f32 v{t+2}, v{out_l+1}, v{lim}, v{t+2}
    v_mul_f32 v{t+3}, v{out_l+1}, v{lre}
    v_fma_f32 v{t+3}, -v{t}, v{lim}, v{t+3}
    v_add_f32 v{t+1}, v{t+1}, v{t+1}
    v_mul_f32 v{out_c}, v{t+2}, v{t+1}
    v_mul_f32 v{out_c+1}, v{t+3}, v{t+1}
    """)

def cmul_add(a, dr, di, lr, li, xr, xi, ar_, ai_):
    a(f"v_fma_f32 v{dr}, v{lr}, v{xr}, v{ar_}")
    a(f"v_fma_f32 v{di}, v{lr}, v{xi}, v{ai_}")
    a(f"v_fma_f32 v{dr}, -v{li}, v{xi}, v{dr}")
    a(f"v_fma_f32 v{di}, v{li}, v{xr}, v{di}")

def gen_ssm(a, ts):
    SLOT = 18432
    ET = 7 * SLOT
    HB = 3 * SLOT
    CT = MISC
    V_DMAT = V_AR
    V_CT = V_AW
    V_EW = V_B1
    G = lambda j: 32 + 16 * j
    a(f"""
    s_load_dwordx2 s[{S_WA}:{S_WA+1}], s[0:1], 24
    s_load_dwordx2 s[{S_WB}:{S_WB+1}], s[0:1], 32
    s_load_dwordx2 s[{S_AUX}:{S_AUX+1}], s[0:1], 40
    s_load_dwordx2 s[{S_AUX2}:{S_AUX2+1}], s[0:1], 48
    s_load_dwordx2 s[{S_P0}:{S_P0+1}], s[0:1], 8
    s_load_dwordx2 s[{S_P1}:{S_P1+1}], s[0:1], 16
    s_load_dwordx2 s[{S_P2}:{S_P2+1}], s[0:1], 56
    s_load_dwordx2 s[{S_DBG}:{S_DBG+1}], s[0:1], 112
    s_sub_u32 s{S_Q}, s{S_SL}, 12
    s_waitcnt lgkmcnt(0)
    s_bitcmp1_b32 s{S_W}, 0
    s_cselect_b32 s{S_WA}, s{S_WB}, s{S_WA}
    s_cselect_b32 s{S_WA+1}, s{S_WB+1}, s{S_WA+1}
    """)
    for s_ in (S_WA, S_AUX, S_AUX2): srd(a, s_, 663552)
    for s_ in (S_P0, S_P1, S_P2): srd(a, s_, 1152)
    srd(a, S_DBG, 256)
    xtoks = x_loads(a)
    a(f"""
    v_lshrrev_b32 v108, 3, v0
    v_mul_u32_u24 v109, 1152, v108
    v_lshrrev_b32 v108, 4, v0
    v_xor_b32 v108, v108, v0
    v_and_b32 v108, 7, v108
    v_lshl_add_u32 v{V_DMA1}, v108, 4, v109
    v_xor_b32 v110, 64, v{V_DMA1}
    v_add_u32 v{V_DMA2}, {8*1152}, v110
    v_lshrrev_b32 v108, 1, v0
    v_mul_u32_u24 v109, 1152, v108
    v_xor_b32 v108, s{S_W}, v0
    v_and_b32 v108, 1, v108
    v_lshl_add_u32 v{V_DMAT}, v108, 4, v109
    s_lshl_b32 s{S_LDSW}, s{S_W}, 11
    s_lshl_b32 s{S_LDST}, s{S_W}, 8
    s_add_u32 s{S_LDST}, s{S_LDST}, 16384
    """)
    a(f"""
    s_mul_i32 s{S_A}, s{S_Q}, {128*1152}
    s_mul_i32 s{S_T}, s{S_HW}, {64*1152}
    s_add_u32 s{S_A}, s{S_A}, s{S_T}
    s_bfe_u32 s{S_T}, s{S_W}, 0x10001
    s_mul_i32 s{S_T2}, s{S_T}, {128 + 15*1152}
    s_add_u32 s{S_A2}, s{S_A}, s{S_T2}
    s_lshl_b32 s{S_T}, s{S_T}, 7
    s_add_u32 s{S_A}, s{S_A}, s{S_T}
    s_lshl_b32 s{S_T2}, s{S_Q}, 8
    s_add_u32 s{S_C+1}, s{S_T}, s{S_T2}
    s_mul_i32 s{S_T}, s{S_HW}, {32*1152}
    s_add_u32 s{S_C+1}, s{S_C+1}, s{S_T}
    s_and_b32 s{S_T}, s{S_W}, 1
    s_mul_i32 s{S_T}, s{S_T}, {16*1152}
    s_add_u32 s{S_C+1}, s{S_C+1}, s{S_T}
    s_mul_i32 s{S_C}, s{S_Q}, {16*1152}
    s_add_u32 s{S_C}, s{S_C}, {512*1152}
    s_lshr_b32 s{S_T}, s{S_W}, 1
    s_lshl_b32 s{S_T}, s{S_T}, 7
    s_add_u32 s{S_C}, s{S_C}, s{S_T}
    s_mul_i32 s{S_C+2}, s{S_W}, {8*1152}
    s_lshl_b32 s{S_T}, s{S_Q}, 5
    s_add_u32 s{S_C+2}, s{S_C+2}, s{S_T}
    s_add_u32 s{S_C+2}, s{S_C+2}, 1024
    """)
    rot_setup(a, 73728)
    PY = 25
    NS1 = 21
    first = list(range(NS1)) + [PY + i for i in range(18)]
    last = list(first)
    reserved = [(k, -1, -1) for k in range(3, 8)] + [(7, 0, 99)] + [(k, 24, PY + 1) for k in range(3, 7)]
    plan = SlotPlan(first, last, reserved, 8, maxper=OPT['maxper'])
    dmas = {}
    vd = (V_DMA1, V_DMA2)
    for t in range(18):
        v0_ = 2 * t
        base = S_A2 if t in (4, 13) else S_A
        dmas[t] = (lambda slot, v0_=v0_, base=base: [(lambda i=i: dma_emit(a, S_LDSW, slot*SLOT + i*1024, vd[i], S_WA, [base], v0_*128 + (v0_//9)*15*1152)) for i in range(2)])
    for t in range(18, 21):
        dmas[t] = (lambda slot, t=t: [(lambda i=i: dma_emit(a, S_LDSW, slot*SLOT + i*1024, vd[i], S_WA, [S_C], (t-18)*512)) for i in range(2)])
    for t in range(21, 39):
        db, mat = (t - 21) // 2, (t - 21) % 2
        sr_ = S_AUX2 if mat else S_AUX
        dmas[t] = (lambda slot, db=db, sr_=sr_: [(lambda i=i: dma_emit(a, S_LDSW, slot*SLOT + i*1024, vd[i], sr_, [S_C+1, S_DB2+db], 0)) for i in range(2)] +
                                                [(lambda: dma_emit(a, S_LDST, slot*SLOT, V_DMAT, sr_, [S_C+2, S_DB2+db], 0, mask="0xffff"))])
    dma_tok = {}
    for t in plan.issue[-1]:
        for f in dmas[t](plan.slot[t]): dma_tok[t] = f()
    a(f"""
    s_lshl_b32 s{S_T}, s{S_W}, 6
    v_add_u32 v100, s{S_T}, v0
    v_min_u32 v100, 143, v100
    s_lshl_b32 s{S_T}, s{S_Q}, 7
    s_lshl_b32 s{S_T2}, s{S_Q}, 4
    s_add_u32 s{S_T2}, s{S_T2}, 384
    v_add_u32 v101, s{S_T}, v100
    v_add_u32 v102, s{S_T2}, v100
    v_cmp_gt_u32 vcc, 128, v100
    v_lshlrev_b32 v100, 5, v100
    v_add_u32 v100, {CT}, v100
    v_cndmask_b32 v101, v102, v101, vcc
    v_lshlrev_b32 v101, 1, v101
    """)
    for j, sp in enumerate((S_P0, S_P1, S_P2)):
        ptok = a.vm(f"buffer_load_ushort v{88+j}, v101, s[{sp}:{sp+3}], 0 offen")
    a(f"""
    v_bfe_u32 v108, v0, 3, 1
    v_lshlrev_b32 v108, 10, v108
    v_and_b32 v109, 7, v0
    v_lshl_add_u32 v108, v109, 7, v108
    v_bfe_u32 v109, v0, 1, 3
    v_lshrrev_b32 v110, 4, v0
    v_xor_b32 v109, v109, v110
    v_lshl_add_u32 v108, v109, 4, v108
    s_lshl_b32 s{S_T}, s{S_HW}, 13
    v_add_u32 v{V_RA}, s{S_T}, v108
    v_add_u32 v{V_RA+1}, 0x10000, v{V_RA}
    v_xor_b32 v{V_RB}, 64, v{V_RA}
    v_xor_b32 v{V_RB+1}, 64, v{V_RA+1}
    """)
    a(f"""
    v_mul_u32_u24 v108, {144*8}, v110
    v_and_b32 v109, 15, v0
    v_lshl_add_u32 v108, v109, 3, v108
    s_mul_i32 s{S_T}, s{S_TW}, {4*144*8}
    s_lshl_b32 s{S_T2}, s{S_HW}, 9
    s_add_u32 s{S_T}, s{S_T}, s{S_T2}
    s_add_u32 s{S_T}, s{S_T}, {ET}
    v_add_u32 v{V_EW}, s{S_T}, v108
    s_lshl_b32 s{S_T2}, s{S_HW}, 11
    s_add_u32 s{S_T2}, s{S_T2}, {CT}
    v_lshlrev_b32 v109, 5, v109
    v_add_u32 v{V_CT}, s{S_T2}, v109
    """)
    a.wait(vm=ptok)
    consts(a, 88, 92, 94, 96, 106)
    a.ds("ds_write_b128 v100, v[92:95]")
    a.ds("ds_write_b64 v100, v[96:97] offset:16")
    layernorm(a, xtoks, True)
    need = [dma_tok[t] for t in dma_tok if first[t] <= 1]
    a.wait(vm=max(need))
    a("s_barrier")
    ts.stamp()
    eoff = lambda j: 1024 if j == 4 else j * 128
    coff = lambda j: 4096 if j == 4 else j * 512
    def s1_step(period, j, kk, h, mat, poff):
        ks = 2 * kk + h
        def rd(buf):
            off = plan.slot[period] * SLOT + poff
            return [f"ds_read_b128 v[{buf}:{buf+3}], {lds_ref(V_RB if h else V_RA, off)}"]
        def mf(buf):
            r = []
            for T in range(2):
                acc = G(j) + 8 * mat + 4 * T
                c = "0" if ks == 0 else f"v[{acc}:{acc+3}]"
                r.append(f"v_mfma_f32_16x16x32_bf16 v[{acc}:{acc+3}], a[{(2*ks+T)*4}:{(2*ks+T)*4+3}], v[{buf}:{buf+3}], {c}")
            return r
        return Step(period, period, rd, mf)
    steps = []
    for t in range(18):
        for e in range(2):
            v_ = 2 * t + e
            for h in range(2):
                for mat in range(2):
                    steps.append(s1_step(t, v_ // 9, v_ % 9, h, mat, (2 * e + mat) * 2048))
    run_steps(a, steps, 0, 17, plan, dmas, dma_tok, OPT['dist'])
    def horner(tiles, tmp, lam):
        toks = [a.ds(f"ds_read_b64 v[{lam+2*i}:{lam+2*i+1}], v{V_CT} offset:{coff(j)}") for i, j in enumerate(tiles)]
        a.wait(ds=toks[-1])
        cur = {j: (G(j), G(j) + 8) for j in tiles}
        for k in range(1, 8):
            for i, j in enumerate(tiles):
                d = tmp + 4 * i + 2 * (k & 1)
                cmul_add(a, d, d + 1, lam + 2*i, lam + 2*i + 1, cur[j][0], cur[j][1], G(j) + k, G(j) + 8 + k)
                cur[j] = (d, d + 1)
        for i, j in enumerate(tiles):
            a.ds(f"ds_write_b64 v{V_EW}, v[{cur[j][0]}:{cur[j][1]}] offset:{eoff(j)}")
    LB = a.newlabel("varB"); LJ = a.newlabel("join")
    st0 = a.state(); tok0 = dict(dma_tok)
    a(f"s_cmp_lg_u32 s{S_HW}, 0")
    a(f"s_cbranch_scc1 {LB}")
    steps = []
    for kk in range(9):
        for h in range(2):
            for mat in range(2):
                steps.append(s1_step(18 + kk // 4, 4, kk, h, mat, ((kk % 4) * 2 + mat) * 2048))
    run_steps(a, steps, 18, 20, plan, dmas, dma_tok, OPT['dist'])
    horner([0, 1], 16, 24)
    horner([2, 3], 16, 28)
    a.wait(ds=a.ds_n)
    horner([4], 16, 24)
    a.wait(ds=a.ds_n)
    stA = a.state(); tokA = dict(dma_tok)
    a(f"s_branch {LJ}")
    a.label(LB)
    a.set_state(st0); dma_tok.clear(); dma_tok.update(tok0)
    a("s_nop 7")
    horner([0, 1, 2, 3], 16, 96)
    a.wait(ds=a.ds_n)
    run_steps(a, [], 18, 20, plan, dmas, dma_tok, 0)
    assert a.vm_n == stA[2] and dma_tok == tokA
    a.label(LJ)
    a.set_state((0, 0, stA[2], min(stA[3], a.vm_done)))
    ts.stamp()
    run_steps(a, [], 21, 21, plan, dmas, dma_tok, 0)
    ER = lambda s_: (16 + 2 * s_) if s_ < 8 else (96 + 2 * (s_ - 8))
    LS = a.newlabel("nc")
    a(f"""
    s_cmp_lt_u32 s{S_W}, 4
    s_cbranch_scc1 {LS}
    s_cmp_eq_u32 s{S_W}, 7
    s_cbranch_scc1 {LS}
    v_lshrrev_b32 v{V_RP}, 4, v{V_L16}
    s_lshl_b32 s{S_T}, s{S_TW}, 6
    v_add_u32 v{V_RP}, s{S_T}, v{V_RP}
    v_min_u32 v{V_RP}, 143, v{V_RP}
    v_lshlrev_b32 v{V_RP+1}, 5, v{V_RP}
    v_lshlrev_b32 v{V_RP}, 3, v{V_RP}
    v_add_u32 v{V_RP+1}, {CT}, v{V_RP+1}
    v_add_u32 v{V_T}, {ET}, v{V_RP}
    ds_read_b64 v[4:5], v{V_RP+1} offset:16
    """)
    for s_ in range(16):
        a(f"ds_read_b64 v[{ER(s_)}:{ER(s_)+1}], v{V_T} offset:{s_*1152}")
    a("s_waitcnt lgkmcnt(0)")
    q = 4
    cur = ER(0)
    for s_ in range(1, 16):
        nx = 6 if cur != 6 else 10
        cmul_add(a, nx, nx + 1, q, q + 1, cur, cur + 1, ER(s_), ER(s_) + 1)
        cur = nx
    assert cur == 6
    a(f"""
    s_lshl_b32 s{S_T}, s{S_Q}, 4
    s_add_u32 s{S_T}, s{S_T}, s{S_M}
    s_mul_i32 s{S_T}, s{S_T}, 1152
    s_add_u32 s{S_T}, s{S_T}, {WS_E}
    buffer_store_dwordx2 v[6:7], v{V_RP}, s[{S_WS}:{S_WS+3}], s{S_T} offen sc0 sc1
    """)
    a(f"""
    v_mul_f32 v10, v4, v4
    v_mul_f32 v11, v4, v5
    v_fma_f32 v10, -v5, v5, v10
    v_add_f32 v11, v11, v11
    """)
    for _ in range(3):
        a(f"""
        v_mul_f32 v8, v11, v11
        v_mul_f32 v11, v10, v11
        v_fma_f32 v10, v10, v10, -v8
        v_add_f32 v11, v11, v11
        """)
    a.label(LS)
    a.wait_all()
    run_steps(a, [], 22, 22, plan, dmas, dma_tok, 0)
    LS = a.newlabel("nl"); LP = a.newlabel("poll"); LG = a.newlabel("go"); LF = a.newlabel("nf")
    a(f"""
    s_cmp_lt_u32 s{S_W}, 4
    s_cbranch_scc1 {LS}
    s_cmp_eq_u32 s{S_W}, 7
    s_cbranch_scc1 {LS}
    s_lshl_b32 s{S_T}, s{S_Q}, 6
    v_lshrrev_b32 v8, 2, v{V_L16}
    s_cmp_lg_u32 s{S_W}, 4
    s_cbranch_scc1 {LF}
    s_lshl_b32 s{S_T2}, s{S_M}, 2
    s_add_u32 s{S_T2}, s{S_T2}, s{S_T}
    v_mov_b32 v7, 1
    s_mov_b64 exec, 1
    buffer_store_dword v7, v8, s[{S_DBG}:{S_DBG+3}], s{S_T2} offen sc0 sc1
    s_mov_b64 exec, -1
    """)
    a.label(LF)
    a(f"""
    v_lshrrev_b32 v6, 4, v{V_L16}
    s_mov_b32 s{S_CNT}, 20000
    """)
    a.label(LP)
    a(f"""
    buffer_load_dword v7, v8, s[{S_DBG}:{S_DBG+3}], s{S_T} offen sc0 sc1
    s_waitcnt vmcnt(0)
    v_cmp_eq_u32 vcc, 0, v7
    v_cmp_gt_u32 s[{S_EX}:{S_EX+1}], s{S_M}, v6
    s_and_b64 vcc, vcc, s[{S_EX}:{S_EX+1}]
    s_cbranch_vccz {LG}
    s_sub_u32 s{S_CNT}, s{S_CNT}, 1
    s_cmp_eq_u32 s{S_CNT}, 0
    s_cbranch_scc1 {LG}
    s_sleep 1
    s_branch {LP}
    """)
    a.label(LG)
    a(f"""
    s_mul_i32 s{S_T}, s{S_Q}, {16*1152}
    s_add_u32 s{S_T}, s{S_T}, {WS_E}
    s_add_u32 s{S_P0}, s{S_WS}, s{S_T}
    s_addc_u32 s{S_P0+1}, s{S_WS+1}, 0
    s_mul_i32 s{S_P0+2}, s{S_M}, 1152
    v_add_u32 v6, s{S_P0+2}, v{V_RP}
    """)
    for i in range(15):
        a(f"v_subrev_u32 v{6 + ((i+1)&1)}, 1152, v{6 + (i&1)}")
        a(f"buffer_load_dwordx2 a[{2*i}:{2*i+1}], v{6 + ((i+1)&1)}, s[{S_P0}:{S_P0+3}], 0 offen sc0 sc1")
    a("s_waitcnt vmcnt(0)")
    a("v_accvgpr_write_b32 a40, v1\nv_accvgpr_write_b32 a41, v2\nv_accvgpr_write_b32 a42, v3\nv_accvgpr_write_b32 a43, v14\nv_accvgpr_write_b32 a44, v15")
    a("v_accvgpr_read_b32 v6, a28\nv_accvgpr_read_b32 v7, a29")
    cur = 6
    for i in range(13, -1, -1):
        a(f"v_accvgpr_read_b32 v14, a{2*i}\nv_accvgpr_read_b32 v15, a{2*i+1}")
        nx = 2 if cur == 6 else 6
        cmul_add(a, nx, nx + 1, 10, 11, cur, cur + 1, 14, 15)
        cur = nx
    for s_ in range(16):
        a(f"ds_write_b64 v{V_T}, v[{cur}:{cur+1}] offset:{s_*1152}")
        if s_ < 15:
            nx = {6: 2, 2: 14, 14: 6}[cur]
            cmul_add(a, nx, nx + 1, q, q + 1, cur, cur + 1, ER(s_), ER(s_) + 1)
            cur = nx
    a("s_waitcnt lgkmcnt(0)")
    a("v_accvgpr_read_b32 v1, a40\nv_accvgpr_read_b32 v2, a41\nv_accvgpr_read_b32 v3, a42\nv_accvgpr_read_b32 v14, a43\nv_accvgpr_read_b32 v15, a44")
    a.label(LS)
    a.wait_all()
    run_steps(a, [], 23, 23, plan, dmas, dma_tok, 0)
    ts.stamp()
    V_HW = V_RP
    a(f"""
    v_lshrrev_b32 v16, 4, v{V_L16}
    v_and_b32 v17, 15, v16
    v_lshlrev_b32 v17, 6, v17
    v_bfe_u32 v18, v16, 2, 2
    v_lshrrev_b32 v19, 4, v16
    v_xor_b32 v18, v18, v19
    v_lshl_add_u32 v17, v18, 4, v17
    s_mul_i32 s{S_T}, s{S_TW}, {SLOT}
    s_lshl_b32 s{S_T2}, s{S_HW}, 12
    s_add_u32 s{S_T}, s{S_T}, s{S_T2}
    s_add_u32 s{S_T}, s{S_T}, {HB}
    v_add_u32 v{V_HW}, s{S_T}, v17
    """)
    def scan(tiles):
        for i, j in enumerate(tiles):
            a.ds(f"ds_read_b64 v[{16+8*i}:{17+8*i}], v{V_EW} offset:{eoff(j)}")
            tk = a.ds(f"ds_read_b128 v[{20+8*i}:{23+8*i}], v{V_CT} offset:{coff(j)}")
        a.wait(ds=tk)
        cur = {j: (16 + 8*i, 17 + 8*i) for i, j in enumerate(tiles)}
        for k in range(8):
            for i, j in enumerate(tiles):
                g_ = G(j); lr = 20 + 8*i; li = lr + 1; cr = lr + 2; ci = lr + 3
                n = 16 + 8*i + 2 * ((k + 1) & 1)
                cmul_add(a, n, n+1, lr, li, cur[j][0], cur[j][1], g_ + k, g_ + 8 + k)
                cur[j] = (n, n + 1)
                a(f"v_mul_f32 v{g_+k}, v{cr}, v{n}")
                a(f"v_mul_f32 v{g_+8+k}, v{cr}, v{n+1}")
                a(f"v_fma_f32 v{g_+k}, -v{ci}, v{n+1}, v{g_+k}")
                a(f"v_fma_f32 v{g_+8+k}, -v{ci}, v{n}, -v{g_+8+k}")
        for i, j in enumerate(tiles):
            for comp in range(2):
                b = G(j) + 8 * comp
                for u in range(4):
                    a(f"v_cvt_pk_bf16_f32 v{b+u}, v{b+2*u}, v{b+2*u+1}")
                a.ds(f"ds_write_b128 v{V_HW}, v[{b}:{b+3}] offset:{(comp*9 + (8 if j == 4 else j))*1024}")
    scan([0, 1]); scan([2, 3])
    LB = a.newlabel("scB")
    a(f"s_cmp_lg_u32 s{S_HW}, 0")
    a(f"s_cbranch_scc1 {LB}")
    scan([4])
    a.label(LB)
    a("s_waitcnt lgkmcnt(0)"); a.ds_done = a.ds_n
    YA = 64
    YT = 72
    YB = 74
    a(f"""
    v_lshrrev_b32 v16, 4, v{V_L16}
    v_bfe_u32 v17, v16, 3, 2
    v_lshlrev_b32 v17, 10, v17
    v_and_b32 v18, 7, v16
    v_lshl_add_u32 v17, v18, 7, v17
    v_bfe_u32 v18, v16, 1, 3
    v_lshrrev_b32 v19, 5, v16
    v_xor_b32 v18, v18, v19
    v_lshl_add_u32 v17, v18, 4, v17
    s_lshl_b32 s{S_T}, s{S_HW}, 13
    v_add_u32 v{YA}, s{S_T}, v17
    v_add_u32 v{YA+1}, 0x10000, v{YA}
    """)
    for k4 in range(1, 4):
        a(f"v_xor_b32 v{YA+2*k4}, {32*k4}, v{YA}")
        a(f"v_xor_b32 v{YA+2*k4+1}, {32*k4}, v{YA+1}")
    a(f"""
    v_and_b32 v17, 31, v16
    v_lshlrev_b32 v17, 5, v17
    v_bfe_u32 v18, v16, 3, 1
    v_xor_b32 v18, v18, v19
    v_lshl_add_u32 v17, v18, 4, v17
    s_lshl_b32 s{S_T}, s{S_HW}, 10
    s_add_u32 s{S_T}, s{S_T}, 16384
    v_add_u32 v{YT}, s{S_T}, v17
    v_add_u32 v{YT+1}, 0x10000, v{YT}
    v_lshlrev_b32 v17, 9, v19
    v_bfe_u32 v18, v16, 2, 2
    v_lshl_add_u32 v17, v18, 6, v17
    v_bfe_u32 v18, v16, 4, 1
    v_xor_b32 v18, v18, v19
    v_lshl_add_u32 v17, v18, 5, v17
    v_and_b32 v18, 3, v16
    v_lshl_add_u32 v17, v18, 3, v17
    s_mul_i32 s{S_T}, s{S_TW}, {SLOT}
    s_add_u32 s{S_T}, s{S_T}, {HB}
    v_add_u32 v{YB}, s{S_T}, v17
    v_xor_b32 v{YB+1}, 16, v{YB}
    """)
    run_steps(a, [], 24, 24, plan, dmas, dma_tok, 0)
    ts.stamp()
    steps = []; brd = {}
    for db in range(9):
        acc = V_ACC0 + 16 * (db & 1)
        for mat in range(2):
            t = 21 + 2 * db + mat
            for kt in range(9):
                k = mat * 9 + kt
                def rd(buf, t=t, kt=kt):
                    if kt == 8: return [f"ds_read_b128 v[{buf}:{buf+3}], {lds_ref(YT, plan.slot[t]*SLOT)}"]
                    return [f"ds_read_b128 v[{buf}:{buf+3}], {lds_ref(YA + 2*(kt & 3), plan.slot[t]*SLOT + (kt >> 2)*4096)}"]
                def mf(buf, acc=acc, k=k):
                    cc = "0" if k == 0 else f"v[{acc}:{acc+15}]"
                    return [f"v_mfma_f32_32x32x16_bf16 v[{acc}:{acc+15}], v[{buf}:{buf+3}], a[{4*k}:{4*k+3}], {cc}"]
                steps.append(Step(PY + 2 * db + mat, t, rd, mf, [(lambda k=k: brd[k])] if db == 0 else None))
    def bload(k):
        for h in range(2):
            brd[k] = a.ds(f"ds_read_b64_tr_b16 a[{4*k+2*h}:{4*k+2*h+1}], v{YB+h} offset:{k*1024 + h*256}")
    for k in range(3): bload(k)
    for k in range(15):
        steps[k].fill.append(lambda k=k: bload(k + 3))
    for db in range(8):
        steps[(db + 1) * 18 + 2].fill.append(store_tile(a, db))
    run_steps(a, steps, PY, PY + 17, plan, dmas, dma_tok, OPT['dist'])
    a("s_nop 7\ns_nop 7")
    store_tile(a, 8)()
    ts.stamp()
    a("s_endpgm")

def gen_main(a):
    ts_on = OPT['ts']
    a(f"""
    s_load_dwordx2 s[{S_X}:{S_X+1}], s[0:1], 0
    s_load_dwordx2 s[{S_WS}:{S_WS+1}], s[0:1], 120
    v_lshrrev_b32 v1, 6, v0
    v_and_b32 v0, 63, v0
    s_cmp_ge_u32 s2, 256
    v_readfirstlane_b32 s{S_W}, v1
    s_cbranch_scc1 .Lexit
    s_and_b32 s{S_SL}, s2, 7
    s_lshl_b32 s{S_SL}, s{S_SL}, 1
    s_bfe_u32 s{S_T}, s2, 0x10003
    s_add_u32 s{S_SL}, s{S_SL}, s{S_T}
    s_lshr_b32 s{S_M}, s2, 4
    s_lshr_b32 s{S_HW}, s{S_W}, 2
    s_and_b32 s{S_TW}, s{S_W}, 3
    """)
    srd(a, S_X, 2359296); srd(a, S_WS, 0x10000000)
    a(f"s_cmp_ge_u32 s{S_SL}, 12")
    a("s_cbranch_scc1 .Lssm")
    ts = TS(a, ts_on, V_TMP)
    ts.stamp()
    gen_ffn(a, ts)
    a.label(".Lexit")
    a("s_endpgm")
    a.label(".Lssm")
    a.set_state((0, 0, 0, 0))
    ts = TS(a, ts_on, V_FR)
    ts.stamp()
    gen_ssm(a, ts)

def gen_reduce(a):
    a(f"""
    s_load_dwordx2 s[4:5], s[0:1], 0
    s_load_dwordx2 s[8:9], s[0:1], 64
    s_load_dwordx2 s[12:13], s[0:1], 104
    s_load_dwordx2 s[16:17], s[0:1], 120
    v_lshrrev_b32 v1, 6, v0
    v_and_b32 v0, 63, v0
    s_cmp_ge_u32 s2, 576
    v_readfirstlane_b32 s20, v1
    s_cbranch_scc1 .Lrexit
    s_lshl_b32 s21, s2, 2
    s_add_u32 s21, s21, s20
    s_lshr_b32 s22, s21, 1
    s_lshl_b32 s22, s22, 11
    s_and_b32 s31, s21, 1
    s_lshl_b32 s23, s31, 8
    s_add_u32 s22, s22, s23
    v_lshrrev_b32 v2, 2, v0
    v_and_b32 v3, 3, v0
    v_lshlrev_b32 v1, 9, v3
    v_lshl_add_u32 v1, v2, 4, v1
    s_mov_b32 s6, 2359296
    s_mov_b32 s7, 0x00020000
    s_mov_b32 s10, 1152
    s_mov_b32 s11, 0x00020000
    s_mov_b32 s14, 4718592
    s_mov_b32 s15, 0x00020000
    s_mov_b32 s18, 0x10000000
    s_mov_b32 s19, 0x00020000
    s_waitcnt lgkmcnt(0)
    """)
    for sl in range(16):
        a(f"buffer_load_dwordx4 v[{8+4*sl}:{11+4*sl}], v1, s[16:19], s22 offen {OPT['ldpol']}")
        if sl < 15: a(f"s_add_u32 s22, s22, {PART}")
    a(f"""
    s_mul_i32 s23, s21, 7282
    s_lshr_b32 s23, s23, 20
    s_mul_i32 s24, s23, 144
    s_sub_u32 s24, s21, s24
    s_lshr_b32 s25, s24, 3
    s_bfe_u32 s27, s24, 0x20001
    s_lshl_b32 s23, s23, 7
    s_lshl_b32 s27, s27, 5
    s_add_u32 s23, s23, s27
    s_lshl_b32 s31, s31, 4
    s_add_u32 s23, s23, s31
    s_lshl_b32 s25, s25, 5
    v_add_u32 v2, s23, v2
    v_lshrrev_b32 v4, 1, v3
    v_and_b32 v3, 1, v3
    v_lshlrev_b32 v3, 2, v3
    v_lshl_add_u32 v3, v4, 4, v3
    v_add_u32 v3, s25, v3
    v_mul_u32_u24 v4, 576, v2
    v_add_u32 v4, v4, v3
    v_lshlrev_b32 v5, 1, v4
    v_lshlrev_b32 v4, 2, v4
    v_lshlrev_b32 v3, 1, v3
    v_lshlrev_b32 v2, 3, v2
    s_mov_b32 s28, {WS_STATS}
    buffer_load_dwordx2 v[72:73], v5, s[4:7], 0 offen
    buffer_load_dwordx2 v[74:75], v5, s[4:7], 0 offen offset:16
    buffer_load_dwordx2 v[76:77], v2, s[16:19], s28 offen
    buffer_load_dwordx2 v[78:79], v3, s[8:11], 0 offen
    buffer_load_dwordx2 v[80:81], v3, s[8:11], 0 offen offset:16
    """)
    def unpack(dst, src):
        a(f"v_lshlrev_b32 v{dst}, 16, v{src}")
        a(f"v_and_b32 v{dst+1}, 0xffff0000, v{src}")
    F = 82; Y = 90; U = 98
    for base, lo, hi in ((F, 0, 12), (Y, 12, 16)):
        for sl in range(lo, hi):
            a(f"s_waitcnt vmcnt({5 + 15 - sl})")
            for j in range(4):
                if sl == lo: unpack(base + 2*j, 8 + 4*sl + j)
                else:
                    unpack(U + 2*(j&1), 8 + 4*sl + j)
                    a(f"v_pk_add_f32 v[{base+2*j}:{base+2*j+1}], v[{base+2*j}:{base+2*j+1}], v[{U+2*(j&1)}:{U+1+2*(j&1)}]")
    for j in range(4):
        f = F + 2*j
        a(f"v_cvt_pk_bf16_f32 v{U}, v{f}, v{f+1}")
        unpack(f, U)
        for e in range(2): a(f"v_mul_f32 v{U+2+e}, 0xbfb8aa3b, v{f+e}")
        for e in range(2): a(f"v_exp_f32 v{U+2+e}, v{U+2+e}")
        a("s_nop 0")
        for e in range(2): a(f"v_add_f32 v{U+2+e}, 1.0, v{U+2+e}")
        for e in range(2): a(f"v_rcp_f32 v{U+2+e}, v{U+2+e}")
        a("s_nop 0")
        for e in range(2): a(f"v_mul_f32 v{f+e}, v{f+e}, v{U+2+e}")
        a(f"v_cvt_pk_bf16_f32 v{U}, v{f}, v{f+1}")
        unpack(f, U)
    a("s_waitcnt vmcnt(0)")
    a(f"v_mul_f32 v{U}, v76, v77")
    for T in range(2):
        unpack(8, 78 + 2*T); unpack(10, 79 + 2*T)
        unpack(12, 72 + 2*T); unpack(14, 73 + 2*T)
        for e in range(4): a(f"v_fma_f32 v{16+e}, v{12+e}, v77, -v{U}")
        for e in (0, 2):
            a(f"v_cvt_pk_bf16_f32 v{U+1}, v{16+e}, v{17+e}")
            unpack(16 + e, U + 1)
        for e in range(4): a(f"v_mul_f32 v{16+e}, v{16+e}, v{8+e}")
        for e in (0, 2):
            a(f"v_cvt_pk_bf16_f32 v{U+1}, v{16+e}, v{17+e}")
            unpack(16 + e, U + 1)
        o = 20 + 4*T
        for e in range(4):
            a(f"v_add_f32 v{16+e}, v{16+e}, v{Y+4*T+e}")
            a(f"v_fma_f32 v{o+e}, v{16+e}, v{F+4*T+e}, v{12+e}")
        a(f"buffer_store_dwordx4 v[{o}:{o+3}], v4, s[12:15], 0 offen offset:{32*T}")
    a.label(".Lrexit")
    a("s_endpgm")

def kdesc(name, nv, acc):
    return f""".p2align 6
.amdhsa_kernel {name}
  .amdhsa_next_free_vgpr {nv}
  .amdhsa_next_free_sgpr 102
  .amdhsa_accum_offset {acc}
  .amdhsa_group_segment_fixed_size 0
  .amdhsa_kernarg_size 128
  .amdhsa_user_sgpr_count 2
  .amdhsa_user_sgpr_kernarg_segment_ptr 1
  .amdhsa_system_sgpr_workgroup_id_x 1
.end_amdhsa_kernel
"""

OPT = dict(rot=1, maxper=2, dist=3, ts=0, stpol="", ldpol="", early=1, prio=0, nodma=0, nobar=0, nomish=0, notrans=0)
def build(path, **kw):
    OPT.update(kw)
    a = Prog(); gen_main(a)
    r = Prog(); gen_reduce(r)
    hdr = open("recurrent_scan__ssm_conv_s5__dense_activation_mish__prompt.s.ref").read().split("; Override")[0]
    txt = hdr + f"""; @launch kernel=main_kernel grid=(256,1,1) block=(512,1,1) lds={LDS_TOTAL}
; @launch kernel=red_kernel grid=(576,1,1) block=(256,1,1) lds=0
.amdgcn_target "amdgcn-amd-amdhsa--gfx950"
.text
.globl main_kernel
.p2align 8
.type main_kernel,@function
main_kernel:
{a.text()}
.globl red_kernel
.p2align 8
.type red_kernel,@function
red_kernel:
{r.text()}
.section .rodata,"a"
{kdesc("main_kernel", 256, 112)}{kdesc("red_kernel", 104, 104)}"""
    open(path, "w").write(txt)

if __name__ == "__main__":
    kw = {}
    for x in sys.argv[2:]:
        k, v = x.split("=")
        kw[k] = int(v) if v.lstrip("-").isdigit() else v.replace("+", " ")
    build(sys.argv[1], **kw)
```
